```python
import torch

def _softmax(x, axis=-1):
    return torch.softmax(x, dim=axis)

def _gelu(x):
    return torch.nn.functional.gelu(x, approximate='tanh')

def _silu(x):
    return torch.nn.functional.silu(x)

def _sigmoid(x):
    return torch.sigmoid(x)

def _layernorm(x, axis=-1, eps=1e-05):
    m = x.mean(dim=axis, keepdim=True)
    v = x.var(dim=axis, keepdim=True, unbiased=False)
    return (x - m) / torch.sqrt(v + eps)

def _scatter_add(tgt, idx, src, axis=0):
    return tgt.clone().index_add_(axis, idx, src)

def _segment_sum(src, seg, n):
    out = torch.zeros((n,) + src.shape[1:], dtype=src.dtype)
    return out.index_add_(0, seg, src)

def _pad(x, pw):
    flat = tuple((v for pair in reversed(pw) for v in pair))
    return torch.nn.functional.pad(x, flat)
kernel_name = 'adaLN_cond__linear_kernel_hedgehog__glu_gated_glu__prompt'

def setup_inputs():

    _w = lambda a: (lambda t: t.to(torch.bfloat16) if t.is_floating_point() else t)(torch.as_tensor(a))

    def _A_setup():
        B, S, D, H = (1, 2048, 512, 32)
        Dh = D // H
        return {'x': _w((lambda *s: torch.randn(*s, dtype=torch.bfloat16) * 0.05)(B, S, D)), 'wqkv': _w((lambda *s: torch.randn(*s, dtype=torch.bfloat16) * 0.4)(D, 3 * D)), 'w_phi': _w((lambda *s: torch.randn(*s, dtype=torch.bfloat16) * 0.4)(H, Dh, Dh) * Dh ** (-0.5)), 'wo': _w((lambda *s: torch.randn(*s, dtype=torch.bfloat16) * 0.05)(D, D))}
    _A_in = _A_setup()

    def _B_setup():
        B, S, D, F = (1, 2048, 512, 1376)
        return {'x': _w((lambda *s: torch.randn(*s, dtype=torch.bfloat16) * 0.05)(B, S, D)), 'w_gate': _w((lambda *s: torch.randn(*s, dtype=torch.bfloat16) * 0.1)(D, F)), 'w_up': _w((lambda *s: torch.randn(*s, dtype=torch.bfloat16) * 0.05)(D, F)), 'w_down': _w((lambda *s: torch.randn(*s, dtype=torch.bfloat16) * 0.05)(F, D))}
    _B_in = _B_setup()
    return {'A_x': _A_in['x'], 'A_wqkv': _A_in['wqkv'], 'A_w_phi': _A_in['w_phi'], 'A_wo': _A_in['wo'], 'B_x': _B_in['x'], 'B_w_gate': _B_in['w_gate'], 'B_w_up': _B_in['w_up'], 'B_w_down': _B_in['w_down'], 'c': _w((lambda *s: torch.randn(*s, dtype=torch.bfloat16) * 0.2)(1, 512) * 8.0), 'w_mod': _w((lambda *s: torch.randn(*s, dtype=torch.bfloat16) * 0.2)(512, 6 * 512) * 512 ** (-0.5) * 8.0)}

def reference(A_x, A_wqkv, A_w_phi, A_wo, B_x, B_w_gate, B_w_up, B_w_down, c, w_mod):

    def _A_ref(x, wqkv, w_phi, wo):
        B, S, D = x.shape
        H = 32
        Dh = D // H
        qkv = (lambda x, *d: x.permute(*d))((x @ wqkv).reshape(B, S, 3, H, Dh), 2, 0, 3, 1, 4)
        q, k, v = (qkv[0], qkv[1], qkv[2])
        pq = torch.einsum('bhsd,hdf->bhsf', q, w_phi)
        pk = torch.einsum('bhsd,hdf->bhsf', k, w_phi)
        phi_q = torch.concatenate([_softmax(pq, axis=-1), _softmax(-pq, axis=-1)], axis=-1)
        phi_k = torch.concatenate([_softmax(pk, axis=-1), _softmax(-pk, axis=-1)], axis=-1)
        kv = torch.einsum('bhsf,bhsd->bhfd', phi_k, v)
        z = torch.einsum('bhsf->bhf', phi_k)
        num = torch.einsum('bhqf,bhfd->bhqd', phi_q, kv)
        den = torch.einsum('bhqf,bhf->bhq', phi_q, z)[..., None] + 1e-06
        o = num / den
        return (lambda x, *d: x.permute(*d))(o, 0, 2, 1, 3).reshape(B, S, D) @ wo

    def _B_ref(x, w_gate, w_up, w_down):
        g = torch.einsum('bsd,df->bsf', x, w_gate)
        u = torch.einsum('bsd,df->bsf', x, w_up)
        h = _sigmoid(g) * u
        return torch.einsum('bsf,fd->bsd', h, w_down)
    x = A_x
    mod = (_silu(c) @ w_mod).reshape(c.shape[0], 6, 1, -1)
    sa, ca, ga, sb, cb, gb = (mod[:, 0].clone(), mod[:, 1].clone(), mod[:, 2].clone(), mod[:, 3].clone(), mod[:, 4].clone(), mod[:, 5].clone())
    h = _layernorm(x, axis=-1) * (1 + ca) + sa
    x = x + ga * _A_ref(h, A_wqkv, A_w_phi, A_wo)
    h = _layernorm(x, axis=-1) * (1 + cb) + sb
    x = x + gb * _B_ref(h, B_w_gate, B_w_up, B_w_down)
    return x
```

```python
import re

TRANS = ('v_exp_f32', 'v_log_f32', 'v_rcp_f32', 'v_rsq_f32', 'v_sqrt_f32', 'v_sin_f32', 'v_cos_f32')
REG = re.compile(r'\b([vas])(\d+)\b|\b([vas])\[(\d+):(\d+)\]|\b(vcc_lo|vcc_hi|vcc|exec_lo|exec_hi|exec|m0|scc)\b')

def regs_of(tok):
    out = set()
    for m in REG.finditer(tok):
        if m.group(1):
            out.add((m.group(1), int(m.group(2))))
        elif m.group(3):
            for i in range(int(m.group(4)), int(m.group(5)) + 1):
                out.add((m.group(3), i))
        else:
            n = m.group(6)
            if n.startswith('vcc'): out.add(('s', 'vcc'))
            elif n.startswith('exec'): out.add(('s', 'exec'))
            else: out.add(('s', n))
    return out

class Ins:
    def __init__(self, text):
        self.text = text
        t = text.split(';')[0].strip()
        self.label = None
        self.op = None
        self.states = 1
        self.dst = set(); self.src = set()
        self.kind = 'other'
        self.srcc = set(); self.ab = set()
        self.passes = 0
        self.dpp = False
        self.sdata = set()
        if t.endswith(':'):
            self.label = t[:-1]; self.states = 0; self.kind = 'label'; return
        if t == '' or t.startswith('.'):
            self.states = 0; self.kind = 'dir'; return
        parts = t.split(None, 1)
        op = parts[0]; self.op = op
        rest = parts[1] if len(parts) > 1 else ''
        ops = []; depth = 0; cur = ''
        for ch in rest:
            if ch == '[': depth += 1
            if ch == ']': depth -= 1
            if ch == ',' and depth == 0:
                ops.append(cur.strip()); cur = ''
            else: cur += ch
        if cur.strip(): ops.append(cur.strip())
        mods = ''
        if ops:
            l = ops[-1].split(None, 1)
            if len(l) > 1:
                ops[-1] = l[0]; mods = l[1]
        self.ops = ops; self.mods = mods
        R = [regs_of(o) for o in ops]
        allr = set().union(*R) if R else set()
        if op == 's_nop':
            self.states = int(ops[0], 0) + 1; self.kind = 'nop'; return
        if op.startswith('v_mfma'):
            self.kind = 'mfma'
            self.passes = 8 if '32x32x16' in op else 4 if '16x16x32' in op else None
            assert self.passes
            self.dst = R[0]; self.ab = R[1] | R[2]; self.srcc = R[3]; self.src = self.ab | self.srcc
            return
        if op.startswith('v_'):
            self.kind = 'valu'
            self.dpp = ('quad_perm' in mods or 'row_' in mods or 'wave_' in mods or op.endswith('_dpp'))
            if op.startswith('v_permlane') and 'swap' in op:
                self.dst = R[0] | R[1]; self.src = R[0] | R[1]
            elif op.startswith('v_cmp'):
                self.dst = R[0]; self.src = set().union(*R[1:])
            elif op.startswith(('v_add_co', 'v_sub_co', 'v_addc_co', 'v_subb_co')):
                self.dst = R[0] | R[1]; self.src = set().union(*R[2:])
            else:
                self.dst = R[0]; self.src = set().union(*R[1:]) if len(R) > 1 else set()
                if op.startswith(('v_fmac', 'v_mac', 'v_dot2c', 'v_writelane', 'v_pk_fmac')) or self.dpp:
                    self.src |= R[0]
                if op.startswith('v_cndmask') and len(ops) == 3:
                    self.src |= {('s', 'vcc')}
            return
        if op.startswith('ds_'):
            self.kind = 'ds'
            if op.startswith(('ds_read', 'ds_bpermute', 'ds_permute', 'ds_swizzle')):
                self.dst = R[0]; self.src = set().union(*R[1:])
            else:
                self.src = allr
            return
        if op.startswith(('buffer_', 'global_')):
            self.kind = 'vmem'
            if 'wbl2' in op or op == 'buffer_inv': return
            islds = re.search(r'\blds\b', mods) is not None
            if 'load' in op and not islds:
                self.dst = R[0]; self.src = set().union(*R[1:])
            elif 'load' in op:
                self.src = allr | {('s', 'm0')}; self.kind = 'vmem'; self.lds = True
            else:
                self.src = allr
                if 'x4' in op or 'x3' in op:
                    self.sdata = R[0] if op.startswith('buffer') else R[1]
            return
        if op.startswith('s_'):
            self.kind = 'salu'
            if op.startswith(('s_cbranch', 's_branch')):
                self.kind = 'branch'; self.target = ops[0]; return
            if op.startswith(('s_waitcnt', 's_barrier', 's_endpgm', 's_sleep', 's_setprio')): return
            if op.startswith(('s_cmp', 's_bitcmp')):
                self.src = allr; return
            self.dst = R[0] if R else set(); self.src = set().union(*R[1:]) if len(R) > 1 else set()
            if 'saveexec' in op: self.dst = self.dst | {('s', 'exec')}
            return
        raise ValueError('unknown op ' + text)

def isv(rs): return {r for r in rs if r[0] in 'va'}
def iss(rs): return {r for r in rs if r[0] == 's'}

def need(p, c):
    n = 0
    if p.kind == 'valu':
        pv = isv(p.dst); ps = iss(p.dst)
        isdot = p.op.startswith('v_dot')
        if c.kind == 'mfma' and pv & c.src: n = max(n, 3 if isdot else 2)
        if c.kind == 'valu':
            if c.dpp and pv & c.src: n = max(n, 2)
            if c.op.startswith('v_permlane') and pv & c.src: n = max(n, 2)
            if c.op.startswith(('v_readlane', 'v_readfirstlane')) and pv & c.src: n = max(n, 1)
            if p.op in TRANS and pv & c.src: n = max(n, 1)
            if ps & c.src:
                n = max(n, 4 if c.op.startswith(('v_readlane', 'v_writelane')) else 2)
            if ('sdwa' in p.op or 'op_sel' in p.mods or 'dst_sel' in p.mods) and pv & (c.src | c.dst): n = max(n, 1)
        if isdot and pv & (c.src | c.dst):
            if c.op == p.op:
                ab = set().union(*[regs_of(o) for o in c.ops[1:3]])
                if pv & ab: n = max(n, 3)
            else:
                n = max(n, 3)
        if c.kind == 'vmem' and ps & c.src: n = max(n, 5)
        if c.kind == 'salu' and ps & c.src: n = max(n, 1)
    if p.kind == 'mfma':
        big = 12 if p.passes == 8 else 8
        if c.kind == 'mfma':
            if p.dst & c.ab: n = max(n, big)
            if p.dst & c.srcc:
                if not (p.dst == c.srcc and p.passes == c.passes): n = max(n, big - 2)
            elif p.dst & c.dst: n = max(n, big)
        elif c.kind in ('valu', 'ds', 'vmem'):
            if p.dst & (c.src | c.dst): n = max(n, big)
            if c.kind == 'valu' and p.srcc & c.dst: n = max(n, 7 if p.passes == 8 else 3)
    if p.kind == 'vmem' and p.sdata:
        if c.kind in ('valu', 'mfma') and p.sdata & c.dst: n = max(n, 2)
        elif p.sdata & c.dst: n = max(n, 1)
    if p.kind == 'salu' and ('s', 'm0') in p.dst and c.kind == 'vmem' and ('s', 'm0') in c.src: n = max(n, 1)
    return n

class Asm:
    def __init__(self):
        self.ins = []
        self.uid = 0
    def __call__(self, text):
        for line in text.split('\n'):
            line = line.strip()
            if not line or line.startswith(';'): continue
            self.ins.append(Ins(line))
    def lab(self, base='L'):
        self.uid += 1
        return f'{base}_{self.uid}'
    def resolve(self):
        out = []
        W = 14
        for c in self.ins:
            if c.states and c.kind not in ('nop',):
                dist = 0; req = 0
                for p in reversed(out):
                    if p.kind == 'branch' and p.op == 's_branch': break
                    if p.op == 's_endpgm': break
                    if dist >= W: break
                    r = need(p, c) - dist
                    if r > req: req = r
                    dist += p.states
                while req > 0:
                    k = min(req, 16)
                    out.append(Ins(f's_nop {k-1}')); req -= k
            out.append(c)
        pos = {x.label: i for i, x in enumerate(out) if x.label}
        for i, b in enumerate(out):
            if b.kind != 'branch': continue
            t = pos[b.target]
            hist = []; dist = 0
            for p in reversed(out[:i + 1]):
                if dist >= W: break
                hist.append((p, dist)); dist += p.states
            d2 = 0
            for c in out[t:]:
                if d2 >= W: break
                if c.states and c.kind != 'nop':
                    for p, d in hist:
                        if need(p, c) > d + d2:
                            raise SystemExit(f'branch hazard: [{p.text}] -> {b.text} -> [{c.text}]')
                if c.op in ('s_branch', 's_endpgm'): break
                d2 += c.states
        self.out = out
        return '\n'.join(('' if x.label else '  ') + x.text for x in out) + '\n'
```

```python
import sys
sys.path.insert(0, 'mk')
from asmlib import Asm
NAME = 'adaLN_cond__linear_kernel_hedgehog__glu_gated_glu__prompt'
DIAG = 'diag' in sys.argv
STOP = None
for x in sys.argv:
    if x.startswith('stop='): STOP = x[5:]
FORCE_GLOBAL = 'glob' in sys.argv
OUT = sys.argv[1]

XCCF = 0x1000; MOD = 0x9000; LF = 0xC000; ST = 0x14000; KV = 0x94000; XB = 0x160000; ZB = 0x360000; ZS = 0x56000
DG = 0x900000
HF, OF, H2F, HHF = 0, 256, 512, 768
S = [0, 32768, 65536, 98304, 131072]
L_WM = S[4]; L_PV = S[4]; L_WPHI = S[4] + 24576; L_SILU = S[4] + 28672; L_KVT = S[4] + 29696; L_Z = S[4] + 32256; L_ZERO = S[4] + 32384
SX, SWQKV, SWPHI, SWO, SWG, SWU, SWD, SC, SWM, SOUT, SWS = [f's[{8+4*i}:{11+4*i}]' for i in range(11)]
srd_info = [(8, 0, 2097152), (12, 8, 1572864), (16, 16, 16384), (20, 24, 524288), (24, 40, 1409024), (28, 48, 1409024),
            (32, 56, 1409024), (36, 64, 1024), (40, 72, 3145728), (44, 80, 2097152), (48, 96, 268435456)]
TAG, LOC, RB, B, WV, XCC, SLF, SXB, SZB, CNT = 's56', 's57', 's58', 's59', 's60', 's61', 's62', 's63', 's64', 's65'
T0, T1, T2, T3, T4, T5, T6, T7 = [f's{66+i}' for i in range(8)]
TT, KH, TILE, CT16 = 's74', 's75', 's76', 's77'
SPIN = 20000
LOG2E = '0x3fb8aa3b'; NLOG2E = '0xbfb8aa3b'

a = Asm()
tsn = [0]
def ts():
    if DIAG:
        i = tsn[0]; tsn[0] += 1
        assert i < 20
        a(f's_memtime s[78:79]\ns_waitcnt lgkmcnt(0)\ns_mov_b32 s{80+i}, s78')

def v(i, n=1): return f'v{i}' if n == 1 else f'v[{i}:{i+n-1}]'
def ac(i, n=1): return f'a{i}' if n == 1 else f'a[{i}:{i+n-1}]'

def dual(stores):
    l1, l2 = a.lab(), a.lab()
    a(f's_cmp_eq_u32 {LOC}, 0\ns_cbranch_scc1 {l1}')
    for s in stores: a(s + ' nt')
    a(f's_branch {l2}\n{l1}:')
    for s in stores: a(s + ' sc1')
    a(f'{l2}:')

def flag_store(soff, imm=0, local=True):
    a(f'v_mov_b32 v3, 0\nv_mov_b32 v4, {TAG}\ns_waitcnt vmcnt(0)\ns_mov_b64 exec, 1')
    st = f'buffer_store_dword v4, v3, {SWS}, {soff} offen offset:{imm}'
    if local: dual([st])
    else: a(st + ' sc1')
    a('s_mov_b64 exec, -1')

def poll_flag(vaddr, soff, imm=0, vt='v4'):
    l, e = a.lab('P'), a.lab('PE')
    a(f'''s_mov_b32 {CNT}, 0
{l}:
buffer_load_dword {vt}, {vaddr}, {SWS}, {soff} offen offset:{imm} sc1
s_add_u32 {CNT}, {CNT}, 1
s_cmp_gt_u32 {CNT}, {SPIN}
s_cbranch_scc1 {e}
s_waitcnt vmcnt(0)
v_cmp_ne_u32 vcc, {TAG}, {vt}
s_cbranch_vccnz {l}
{e}:
s_waitcnt vmcnt(0)''')

def dma(n, vaddr, srd, soff0, sstep, lds0, tmp=T0):
    sg, sc = soff0; lg, lc = lds0
    a(f's_add_u32 {tmp}, {sg}, {sc}' if sg else f's_mov_b32 {tmp}, {sc}')
    a(f's_add_u32 m0, {lg}, {lc}' if lg else f's_mov_b32 m0, {lc}')
    for i in range(n):
        a(f'buffer_load_dwordx4 {vaddr}, {srd}, {tmp} offen lds')
        if i + 1 < n:
            a(f's_add_u32 m0, m0, 1024\ns_add_u32 {tmp}, {tmp}, {sstep}')

MF = 'v_mfma_f32_32x32x16_bf16'
MF16 = 'v_mfma_f32_16x16x32_bf16'

def softmax16(p, tmp, out):
    mx, mn, sp, sn = tmp + 32, tmp + 33, tmp + 34, tmp + 35
    a(f'v_max3_f32 v{mx}, v{p}, v{p+1}, v{p+2}\nv_min3_f32 v{mn}, v{p}, v{p+1}, v{p+2}')
    for i in range(3, 15, 2):
        a(f'v_max3_f32 v{mx}, v{mx}, v{p+i}, v{p+i+1}\nv_min3_f32 v{mn}, v{mn}, v{p+i}, v{p+i+1}')
    a(f'v_max_f32 v{mx}, v{mx}, v{p+15}\nv_min_f32 v{mn}, v{mn}, v{p+15}')
    for i in range(16):
        a(f'v_sub_f32 v{tmp+i}, v{p+i}, v{mx}\nv_sub_f32 v{tmp+16+i}, v{mn}, v{p+i}')
    for i in range(32):
        a(f'v_mul_f32 v{tmp+i}, {LOG2E}, v{tmp+i}')
    for i in range(32):
        a(f'v_exp_f32 v{tmp+i}, v{tmp+i}')
    a(f'v_add_f32 v{sp}, v{tmp}, v{tmp+1}\nv_add_f32 v{sn}, v{tmp+16}, v{tmp+17}')
    for i in range(2, 16):
        a(f'v_add_f32 v{sp}, v{sp}, v{tmp+i}\nv_add_f32 v{sn}, v{sn}, v{tmp+16+i}')
    a(f'v_rcp_f32 v{sp}, v{sp}\nv_rcp_f32 v{sn}, v{sn}')
    for i in range(16):
        a(f'v_mul_f32 v{tmp+i}, v{tmp+i}, v{sp}')
    for i in range(16):
        a(f'v_mul_f32 v{tmp+16+i}, v{tmp+16+i}, v{sn}')
    for i in range(16):
        a(f'v_cvt_pk_bf16_f32 v{out+i}, v{tmp+2*i}, v{tmp+2*i+1}')

def unpack(dst, src, n):
    for i in range(n):
        a(f'v_lshlrev_b32 v{dst+2*i}, 16, v{src+i}\nv_and_b32 v{dst+2*i+1}, 0xffff0000, v{src+i}')

def finish():
    a('s_branch L_fin')

a(f's_cmp_ge_u32 s2, 256\ns_cbranch_scc1 L_end')
for (r, off, sz) in srd_info:
    a(f's_load_dwordx2 s[{r}:{r+1}], s[0:1], {off}')
if DIAG:
    a('s_memtime s[78:79]\ns_memrealtime s[100:101]')
a(f'''v_and_b32 v1, 63, v0
v_lshrrev_b32 v3, 6, v0
s_and_b32 {T0}, s2, 7
v_readfirstlane_b32 {WV}, v3
s_lshr_b32 {T1}, s2, 3
s_lshr_b32 {T2}, {T1}, 4
s_lshl_b32 {RB}, {T0}, 1
s_add_u32 {RB}, {RB}, {T2}
s_and_b32 {B}, {T1}, 15
s_getreg_b32 {XCC}, hwreg(HW_REG_XCC_ID)''')
for (r, off, sz) in srd_info:
    a(f's_mov_b32 s{r+2}, {sz}\ns_mov_b32 s{r+3}, 0x00020000')
a(f'''s_lshl_b32 {SLF}, {RB}, 11
s_add_u32 {SLF}, {SLF}, {LF}
s_lshl_b32 {SXB}, {RB}, 17
s_add_u32 {SXB}, {SXB}, {XB}
s_mul_i32 {SZB}, {RB}, {ZS}
s_add_u32 {SZB}, {SZB}, {ZB}
; v2 = fragment voffset: ((l%32)/4)*4096 + (l/32)*64 + (l%4)*16
v_bfe_u32 v2, v1, 2, 3
v_lshlrev_b32 v2, 12, v2
v_lshrrev_b32 v3, 5, v1
v_lshl_add_u32 v2, v3, 6, v2
v_and_b32 v4, 3, v1
v_lshl_add_u32 v2, v4, 4, v2
; LN row address v5 = (128rb + 8b + 4(wv>>1) + l%4)*1024 + (l/4)*16
s_lshl_b32 {T2}, {RB}, 7
s_lshl_b32 {T3}, {B}, 3
s_add_u32 {T2}, {T2}, {T3}
s_lshr_b32 {T3}, {WV}, 1
s_lshl_b32 {T3}, {T3}, 2
s_add_u32 {T2}, {T2}, {T3}
s_lshl_b32 {T2}, {T2}, 10
v_lshrrev_b32 v6, 2, v1
v_lshlrev_b32 v5, 10, v4
v_lshl_add_u32 v5, v6, 4, v5
s_waitcnt lgkmcnt(0)''')
if DIAG:
    a('s_mov_b32 s80, s78'); tsn[0] = 1
a(f's_load_dword {TAG}, s[48:49], 0')
LM1 = a.lab()
a(f'''s_mul_i32 {T4}, {T0}, 24
s_add_u32 {T4}, {T4}, {T1}
s_cmp_ge_u32 {T1}, 24
s_cselect_b32 {T5}, 1, 0
s_or_b32 {T5}, {T5}, {WV}
s_cmp_lg_u32 {T5}, 0
s_cbranch_scc1 {LM1}
v_lshlrev_b32 v7, 4, v1
buffer_load_dwordx4 v[104:107], v7, {SC}, 0 offen
v_lshrrev_b32 v8, 1, v1
v_mul_u32_u24 v8, 6144, v8
v_and_b32 v9, 1, v1
v_lshl_add_u32 v8, v9, 4, v8
s_lshl_b32 {T6}, {T4}, 5''')
dma(16, 'v8', SWM, (T6, 0), 32 * 6144, (None, L_WM), tmp=T7)
a(f'{LM1}:')
for i in range(4):
    a(f'buffer_load_dwordx4 {v(176+4*i,4)}, v5, {SX}, {T2} offen offset:{256*i}')
a(f'''v_lshlrev_b32 v7, 4, v1
s_lshl_b32 {T6}, {B}, 10
s_lshl_b32 {T3}, {WV}, 10''')
dma(1, 'v7', SWPHI, (T6, 0), 0, (T3, L_WPHI), tmp=T7)
a(f'''v_lshlrev_b32 v9, 7, v1
s_cmp_lg_u32 {WV}, 3
s_cbranch_scc1 L_warm1
s_lshl_b32 {T6}, {B}, 13
s_add_u32 {T6}, {T6}, {SXB}
buffer_load_dword v232, v9, {SWS}, {T6} offen
v_and_b32 v11, 15, v1
v_lshlrev_b32 v11, 7, v11
buffer_load_dword v232, v11, {SWS}, {SLF} offen
s_lshl_b32 {T6}, {RB}, 15
s_lshl_b32 {T7}, {B}, 11
s_add_u32 {T6}, {T6}, {T7}
s_add_u32 {T6}, {T6}, {ST}
buffer_load_dword v232, v11, {SWS}, {T6} offen
s_branch L_warm2
L_warm1:
s_lshl_b32 {T6}, {WV}, 13
v_add_u32 v9, {T6}, v9
v_min_u32 v9, {171*128}, v9
s_mul_i32 {T6}, {B}, {172*128}
s_add_u32 {T6}, {T6}, {SZB}
buffer_load_dword v232, v9, {SWS}, {T6} offen
L_warm2:''')
a(f'''v_mul_u32_u24 v12, 3072, v6
v_lshl_add_u32 v12, v4, 4, v12
s_mul_i32 {T6}, {WV}, {128*3072}
s_lshl_b32 {T7}, {B}, 6
s_add_u32 {T6}, {T6}, {T7}
s_lshl_b32 {T3}, {WV}, 13''')
dma(8, 'v12', SWQKV, (T6, 1024), 16 * 3072, (T3, S[0]), tmp=T7)
dma(8, 'v12', SWQKV, (T6, 2048), 16 * 3072, (T3, S[1]), tmp=T7)
dma(8, 'v12', SWQKV, (T6, 0), 16 * 3072, (T3, S[2]), tmp=T7)
a(f'''v_bfe_u32 v13, v1, 2, 3
v_lshlrev_b32 v13, 10, v13
v_lshrrev_b32 v3, 5, v1
v_lshl_add_u32 v13, v3, 6, v13
v_lshl_add_u32 v13, v4, 4, v13
s_and_b32 {T6}, {B}, 7
s_lshl_b32 {T6}, {T6}, 7
s_lshl_b32 {T7}, {WV}, 16
s_add_u32 s55, {T6}, {T7}''')
dma(8, 'v13', SWO, ('s55', 0), 8192, (T3, S[3]), tmp=T7)
a(f'''s_waitcnt lgkmcnt(0)
s_mul_i32 {TAG}, {TAG}, 0x9E3779B5
s_add_u32 {TAG}, {TAG}, 0x7F4A7C15
s_cmp_lg_u32 {WV}, 3
s_cbranch_scc1 L_nx
s_lshl_b32 {T6}, {RB}, 4
s_add_u32 {T6}, {T6}, {B}
s_lshl_b32 {T6}, {T6}, 7
s_add_u32 {T6}, {T6}, {XCCF}
v_mov_b32 v3, 0
v_mov_b32 v10, {TAG}
v_mov_b32 v11, {XCC}
s_mov_b64 exec, 1
buffer_store_dwordx2 v[10:11], v3, {SWS}, {T6} offen sc1
s_mov_b64 exec, -1
v_mov_b32 v10, 0
v_lshlrev_b32 v11, 2, v1
v_and_b32 v11, 63, v11
ds_write_b32 v11, v10 offset:{L_ZERO - 131072 + 65536 - 65536}
L_nx:''' .replace(f'ds_write_b32 v11, v10 offset:{L_ZERO - 131072 + 65536 - 65536}', f'v_add_u32 v11, {L_ZERO}, v11\nds_write_b32 v11, v10'))
NW = 1 + 1 + 24 + 8
LM2 = a.lab()
a(f'''s_cmp_lg_u32 {T5}, 0
s_cbranch_scc1 {LM2}
s_waitcnt vmcnt({16 + 4 + NW})''')
unpack(108, 104, 4)
for i in range(8): a(f'v_mul_f32 v{116+i}, {NLOG2E}, v{108+i}')
for i in range(8): a(f'v_exp_f32 v{116+i}, v{116+i}')
for i in range(8): a(f'v_add_f32 v{116+i}, 1.0, v{116+i}')
for i in range(8): a(f'v_rcp_f32 v{116+i}, v{116+i}')
for i in range(8): a(f'v_mul_f32 v{116+i}, v{116+i}, v{108+i}')
for i in range(4): a(f'v_cvt_pk_bf16_f32 v{104+i}, v{116+2*i}, v{117+2*i}')
a(f'''v_lshlrev_b32 v7, 4, v1
v_add_u32 v7, {L_SILU}, v7
ds_write_b128 v7, v[104:107]
v_lshrrev_b32 v8, 4, v1
v_lshlrev_b32 v9, 4, v8
v_add_u32 v9, {L_SILU}, v9
v_bfe_u32 v10, v1, 2, 2
v_lshl_add_u32 v10, v8, 3, v10
v_lshlrev_b32 v10, 5, v10
v_lshl_add_u32 v10, v4, 3, v10
v_add_u32 v10, {L_WM}, v10
s_waitcnt lgkmcnt(0)''')
for n in range(16):
    a(f'ds_read_b128 {v(32+4*n,4)}, v9 offset:{64*n}')
a(f's_waitcnt vmcnt({4 + NW})')
for n in range(16):
    a(f'ds_read_b64_tr_b16 {v(112+4*n,2)}, v10 offset:{1024*n}\nds_read_b64_tr_b16 {v(114+4*n,2)}, v10 offset:{1024*n+128}')
a('s_waitcnt lgkmcnt(0)')
for n in range(16):
    a(f'{MF16} v[96:99], {v(112+4*n,4)}, {v(32+4*n,4)}, {"0" if n == 0 else "v[96:99]"}')
a(f'''s_lshr_b32 {T6}, {T4}, 5
s_cmp_eq_u32 {T6}, 1
s_cselect_b32 {T7}, 1.0, 0
s_cmp_eq_u32 {T6}, 4
s_cselect_b32 {T7}, 1.0, {T7}
v_cvt_pk_bf16_f32 v100, v96, v97
v_cvt_pk_bf16_f32 v101, v98, v99''')
unpack(96, 100, 2)
for i in range(4): a(f'v_add_f32 v{96+i}, {T7}, v{96+i}')
a(f'''v_cvt_pk_bf16_f32 v100, v96, v97
v_cvt_pk_bf16_f32 v101, v98, v99
v_mov_b32 v102, {TAG}
v_mov_b32 v103, {TAG}
s_lshl_b32 {T6}, {T4}, 6
s_add_u32 {T6}, {T6}, {MOD}
s_mov_b32 exec_lo, 0x00010001
s_mov_b32 exec_hi, 0x00010001
buffer_store_dwordx4 v[100:103], v1, {SWS}, {T6} offen sc1
s_mov_b64 exec, -1
{LM2}:''')
ts()
a(f's_waitcnt vmcnt({NW})')
unpack(192, 176, 16)
def red4(r, t):
    a(f'''v_add_f32_dpp v{r}, v{r}, v{r} row_ror:4 row_mask:0xf bank_mask:0xf
v_add_f32_dpp v{r}, v{r}, v{r} row_ror:8 row_mask:0xf bank_mask:0xf
v_mov_b32 v{t}, v{r}
v_permlane16_swap_b32 v{t}, v{r}
v_add_f32 v{r}, v{r}, v{t}
v_mov_b32 v{t}, v{r}
v_permlane32_swap_b32 v{t}, v{r}
v_add_f32 v{r}, v{r}, v{t}''')
a('v_add_f32 v224, v192, v193')
for i in range(2, 32): a(f'v_add_f32 v224, v224, v{192+i}')
red4(224, 225)
a(f'v_mul_f32 v224, {1/512}, v224')
for i in range(32): a(f'v_sub_f32 v{192+i}, v{192+i}, v224')
a('v_mul_f32 v224, v192, v192')
for i in range(1, 32): a(f'v_fmac_f32 v224, v{192+i}, v{192+i}')
red4(224, 225)
a(f'''v_mov_b32 v225, 0x3727c5ac
v_fmac_f32 v225, {1/512}, v224
v_rsq_f32 v224, v225
s_bitcmp1_b32 {WV}, 0
s_cbranch_scc1 L_lnhi''')
for i in range(16): a(f'v_mul_f32 v{176+i}, v{192+i}, v224')
a('s_branch L_lnj\nL_lnhi:\ns_nop 0')
for i in range(16): a(f'v_mul_f32 v{176+i}, v{208+i}, v224')
a('L_lnj:')
a(f'''v_and_b32 v7, 15, v1
v_lshlrev_b32 v7, 7, v7
s_lshl_b32 {T6}, {RB}, 11
s_add_u32 {T6}, {T6}, {XCCF}
s_mov_b32 {CNT}, 0
L_xp:
buffer_load_dwordx2 v[8:9], v7, {SWS}, {T6} offen sc1
s_add_u32 {CNT}, {CNT}, 1
s_cmp_gt_u32 {CNT}, {SPIN}
s_cbranch_scc1 L_xe
s_waitcnt vmcnt(0)
v_cmp_ne_u32 vcc, {TAG}, v8
s_cbranch_vccnz L_xp
L_xe:
s_waitcnt vmcnt(0)
v_cmp_ne_u32 vcc, {XCC}, v9
s_nop 1
s_cmp_eq_u64 vcc, 0
s_cselect_b32 {LOC}, {0 if FORCE_GLOBAL else 1}, 0''')
ts()
a(f'''v_bfe_u32 v7, v1, 4, 1
v_lshl_add_u32 v7, v7, 2, v4        ; q
v_and_b32 v8, 1, v7
v_lshrrev_b32 v9, 1, v7             ; a
v_bfe_u32 v10, v1, 2, 2             ; rr
v_lshlrev_b32 v11, 9, v8
v_lshl_add_u32 v11, v10, 5, v11
v_lshl_add_u32 v11, v9, 3, v11
s_lshl_b32 {T3}, {WV}, 10
s_add_u32 {T3}, {T3}, {L_WPHI}
v_add_u32 v11, {T3}, v11
ds_read_b64_tr_b16 v[24:25], v11
ds_read_b64_tr_b16 v[26:27], v11 offset:128
ds_read_b64_tr_b16 v[28:29], v11 offset:256
ds_read_b64_tr_b16 v[30:31], v11 offset:384
; v14 = tr lane address for qkv tiles: (8hf + rr)*64 + (4*(q%2) + q/2)*8
v_lshrrev_b32 v3, 5, v1
v_lshl_add_u32 v14, v3, 3, v10
v_lshlrev_b32 v14, 6, v14
v_lshl_add_u32 v14, v8, 5, v14
v_lshl_add_u32 v14, v9, 3, v14
v_bfe_u32 v8, v1, 2, 1
v_cmp_eq_u32 vcc, v8, v3
s_waitcnt lgkmcnt(0)''')
for i in range(8): a(f'v_cndmask_b32 v{24+i}, 0, v{24+i}, vcc')
a(f'''v_lshrrev_b32 v7, 1, v4
v_lshlrev_b32 v7, 11, v7
v_and_b32 v8, 1, v1
v_lshl_add_u32 v7, v8, 4, v7
v_lshl_add_u32 v7, v6, 5, v7
s_and_b32 {T6}, {WV}, 1
s_lshl_b32 {T7}, {T6}, 10
s_add_u32 {T7}, {T7}, {MOD}
v_mov_b32 v15, 0xffff0000
s_mov_b32 {CNT}, 0
L_mp:
buffer_load_dwordx4 v[224:227], v7, {SWS}, {T7} offen sc1
buffer_load_dwordx4 v[228:231], v7, {SWS}, {T7} offen offset:512 sc1
s_add_u32 {CNT}, {CNT}, 1
s_cmp_gt_u32 {CNT}, {SPIN}
s_cbranch_scc1 L_me
s_waitcnt vmcnt(0)
v_cmp_ne_u32 vcc, {TAG}, v226
v_cmp_ne_u32 s[4:5], {TAG}, v230
s_nop 1
s_or_b64 vcc, vcc, s[4:5]
s_cbranch_vccnz L_mp
L_me:
s_waitcnt vmcnt(0)''')
ts()
for i in range(2):
    for q in range(4):
        for d in range(2):
            base = (192 if q < 2 else 208) + 8 * i + 4 * (q % 2) + 2 * d
            qp = f'quad_perm:[{q},{q},{q},{q}] row_mask:0xf bank_mask:0xf'
            a(f'v_cvt_f32_bf16_dpp v{base}, v{224+4*i+d} {qp}\nv_and_b32_dpp v{base+1}, v{224+4*i+d}, v15 {qp}')
for i in range(16): a(f'v_fmac_f32 v{192+i}, v{176+i}, v{208+i}')
for i in range(8): a(f'v_cvt_pk_bf16_f32 v{176+i}, v{192+2*i}, v{193+2*i}')
a(f'''v_lshlrev_b32 v7, 4, v1
s_lshl_b32 {T6}, {B}, 13
s_lshl_b32 {T7}, {WV}, 11
s_add_u32 {T6}, {T6}, {T7}
s_add_u32 {T6}, {T6}, {SXB}''')
dual([f'buffer_store_dwordx4 v[176:179], v7, {SWS}, {T6} offen', f'buffer_store_dwordx4 v[180:183], v7, {SWS}, {T6} offen offset:1024'])
a(f'''s_lshl_b32 {T6}, {B}, 4
s_lshl_b32 {T7}, {WV}, 2
s_add_u32 {T6}, {T6}, {T7}
s_add_u32 {T6}, {T6}, {SLF}''')
flag_store(T6, HF)
a(f'''v_and_b32 v7, 15, v1
v_lshlrev_b32 v7, 2, v7
s_lshl_b32 {T6}, {WV}, 6
s_add_u32 {T6}, {T6}, {SLF}''')
poll_flag('v7', T6, HF)
ts()
a(f's_lshl_b32 {T6}, {WV}, 15\ns_add_u32 {T6}, {T6}, {SXB}')
for ks in range(32):
    a(f'buffer_load_dwordx4 {ac(4*ks,4)}, v2, {SWS}, {T6} offen offset:{128*ks} sc1')
a('s_barrier')

def gemm_loop(nk, tiles, bfrag, ring, depth, vm_after=None, koff=lambda ks: 1024 * ks):
    nt = len(tiles)
    def rd(ks):
        for t, (acc, va, bo) in enumerate(tiles):
            r = ring + ((ks % (depth + 1)) * nt + t) * 4
            a(f'ds_read_b64_tr_b16 {v(r,2)}, {va} offset:{bo + koff(ks)}\nds_read_b64_tr_b16 {v(r+2,2)}, {va} offset:{bo + koff(ks) + 256}')
    for ks in range(min(depth, nk)): rd(ks)
    for ks in range(nk):
        if ks + depth < nk: rd(ks + depth)
        left = min(depth, nk - 1 - ks) * nt * 2
        w = f'lgkmcnt({min(left, 15)})'
        if vm_after is not None: w = f'vmcnt({nk - 1 - ks + vm_after}) ' + w
        a(f's_waitcnt {w}')
        for t, (acc, va, bo) in enumerate(tiles):
            r = ring + ((ks % (depth + 1)) * nt + t) * 4
            a(f'{MF} {acc}, {v(r,4)}, {bfrag(ks)}, {"0" if ks == 0 else acc}')

gemm_loop(32, [('v[32:47]', 'v14', S[0]), ('v[48:63]', 'v14', S[1])], lambda ks: ac(4 * ks, 4), 80, 2, vm_after=0)
ts()
def feat_map(acc, out):
    for i in range(8): a(f'v_cvt_pk_bf16_f32 v{acc+i}, v{acc+2*i}, v{acc+2*i+1}')
    a(f'{MF} v[64:79], v[24:27], {v(acc,4)}, 0\n{MF} v[64:79], v[28:31], {v(acc+4,4)}, v[64:79]')
for i in range(8): a(f'v_cvt_pk_bf16_f32 v{32+i}, v{32+2*i}, v{33+2*i}')
a(f'{MF} v[64:79], v[24:27], v[32:35], 0\n{MF} v[64:79], v[28:31], v[36:39], v[64:79]')
for i in range(8): a(f'v_cvt_pk_bf16_f32 v{48+i}, v{48+2*i}, v{49+2*i}')
a(f'''v_and_b32 v7, 31, v1
v_mul_u32_u24 v7, 96, v7
v_lshrrev_b32 v3, 5, v1
v_mul_u32_u24 v8, 12288, v3
v_add_u32 v8, v7, v8
s_mul_i32 {T6}, {WV}, {32*96}
s_add_u32 {T6}, {T6}, {L_PV}
v_add_u32 v8, {T6}, v8
ds_write_b128 v8, v[48:51] offset:64
ds_write_b128 v8, v[52:55] offset:80''')
softmax16(64, 104, 152)
for i in range(4): a(f'ds_write_b128 v8, {v(152+4*i,4)} offset:{16*i}')
a(f'''v_lshrrev_b32 v7, 2, v1
v_mul_u32_u24 v7, 96, v7
v_and_b32 v4, 3, v1
v_lshl_add_u32 v7, v4, 3, v7
s_lshr_b32 {T6}, {WV}, 1
s_mul_i32 {T6}, {T6}, 12288
s_add_u32 {T6}, {T6}, {L_PV}
v_add_u32 v7, {T6}, v7
s_and_b32 {T7}, {WV}, 1
s_lshl_b32 {T7}, {T7}, 5
v_add_u32 v9, {T7}, v7
v_mov_b32 v100, 0x3f803f80
v_mov_b32 v101, 0x3f803f80
v_mov_b32 v102, 0x3f803f80
v_mov_b32 v103, 0x3f803f80
s_waitcnt lgkmcnt(0)
s_barrier''')
for n in range(4):
    for u in range(2):
        a(f'ds_read_b64_tr_b16 {v(32+4*n+2*u,2)}, v9 offset:{(32*n+16*u)*96}')
        a(f'ds_read_b64_tr_b16 {v(48+4*n+2*u,2)}, v7 offset:{(32*n+16*u)*96+64}')
for n in range(4):
    a(f's_waitcnt lgkmcnt({12-4*n})')
    a(f'{MF16} v[64:67], {v(32+4*n,4)}, {v(48+4*n,4)}, {"0" if n == 0 else "v[64:67]"}')
    a(f'{MF16} v[68:71], {v(32+4*n,4)}, v[100:103], {"0" if n == 0 else "v[68:71]"}')
a(f'''s_lshl_b32 {T6}, {B}, 2
s_add_u32 {T6}, {T6}, {WV}
s_mul_i32 s54, {T6}, {16*768}
s_add_u32 s54, s54, {KV}
s_mul_i32 {T6}, {RB}, 768
s_add_u32 {T6}, {T6}, s54
v_and_b32 v7, 15, v1
v_lshlrev_b32 v7, 5, v7
v_lshrrev_b32 v8, 4, v1
v_lshl_add_u32 v7, v8, 3, v7
v_cvt_pk_bf16_f32 v64, v64, v65
v_cvt_pk_bf16_f32 v65, v66, v67
buffer_store_dwordx2 v[64:65], v7, {SWS}, {T6} offen sc1
s_mov_b32 exec_lo, 0x00010001
s_mov_b32 exec_hi, 0x00010001
buffer_store_dwordx4 v[68:71], v1, {SWS}, {T6} offen offset:512 sc1
s_mov_b64 exec, -1''')
flag_store(T6, 640, local=False)
ts()
a(f'''v_lshrrev_b32 v6, 2, v1
v_and_b32 v4, 3, v1
v_mul_u32_u24 v12, 2752, v6
v_xor_b32 v15, 2, v4
v_lshl_add_u32 v15, v15, 4, v12
v_lshl_add_u32 v12, v4, 4, v12
s_lshl_b32 s53, {WV}, 13
s_mul_i32 s52, {WV}, {128*2752}
s_lshl_b32 {T7}, {B}, 6
s_add_u32 s52, s52, {T7}''')
dma(8, 'v13', SWO, ('s55', 262144), 8192, ('s53', S[0]))
dma(8, 'v12', SWG, ('s52', 0), 16 * 2752, ('s53', S[1]))
a(f'v_add_u32 v7, {S[2]}, v14')
gemm_loop(32, [('v[32:47]', 'v7', 0)], lambda ks: ac(4 * ks, 4), 80, 3)
for i in range(8): a(f'v_cvt_pk_bf16_f32 v{32+i}, v{32+2*i}, v{33+2*i}')
a(f'{MF} v[64:79], v[24:27], v[32:35], 0\n{MF} v[64:79], v[28:31], v[36:39], v[64:79]')
softmax16(64, 104, 152)
ts()
a(f'''v_and_b32 v7, 15, v1
v_mul_u32_u24 v7, 768, v7''')
poll_flag('v7', 's54', 640)
ts()
a(f'''v_lshrrev_b32 v3, 5, v1
v_mul_u32_u24 v7, 768, v3
v_and_b32 v8, 31, v1
v_lshl_add_u32 v7, v8, 4, v7
v_lshrrev_b32 v9, 4, v1
v_mul_u32_u24 v9, 768, v9
v_and_b32 v10, 15, v1
v_lshl_add_u32 v9, v10, 2, v9''')
for p in range(4):
    if p: a(f's_add_u32 {T6}, s54, {3072*p}')
    so = T6 if p else 's54'
    a(f'buffer_load_dwordx4 {v(32+8*p,4)}, v7, {SWS}, {so} offen sc1')
    a(f'buffer_load_dwordx4 {v(36+8*p,4)}, v7, {SWS}, {so} offen offset:1536 sc1')
    a(f'buffer_load_dword v{64+p}, v9, {SWS}, {so} offen offset:512 sc1')
a(f'''s_or_b32 {T6}, s2, {WV}
s_cmp_lg_u32 {T6}, 0
s_cbranch_scc1 L_nb
v_mov_b32 v68, 0
v_mov_b32 v69, {TAG}
s_mov_b64 exec, 1
buffer_store_dword v69, v68, {SWS}, 0 offen sc1
s_mov_b64 exec, -1
L_nb:''')
a(f'''s_and_b32 {TT}, {WV}, 1
s_lshr_b32 {KH}, {WV}, 1
s_lshr_b32 {TILE}, {B}, 3
s_lshl_b32 {TILE}, {TILE}, 1
s_add_u32 {TILE}, {TILE}, {TT}
s_and_b32 {CT16}, {B}, 7
s_lshl_b32 {CT16}, {CT16}, 1
s_add_u32 {CT16}, {CT16}, {KH}
v_lshlrev_b32 v11, 5, v3
s_lshl_b32 {T6}, {CT16}, 7
s_add_u32 {T6}, {T6}, {MOD + 2*2048}''')
for sec in range(3):
    if sec == 2: a(f's_add_u32 {T6}, {T6}, 4096')
    for s in range(2):
        for g in range(2):
            a(f'buffer_load_dwordx2 {v(176+8*sec+4*s+2*g,2)}, v11, {SWS}, {T6} offen offset:{(sec%2)*2048 + 64*s + 16*g} sc1')
a(f'''v_lshlrev_b32 v11, 10, v8
v_lshl_add_u32 v11, v3, 4, v11
s_lshl_b32 {T6}, {RB}, 2
s_add_u32 {T6}, {T6}, {TILE}
s_lshl_b32 {T6}, {T6}, 15
s_lshl_b32 {T7}, {CT16}, 6
s_add_u32 {T6}, {T6}, {T7}
buffer_load_dwordx4 v[168:171], v11, {SX}, {T6} offen
buffer_load_dwordx4 v[172:175], v11, {SX}, {T6} offen offset:32
s_mov_b32 {T4}, 0x00003f80
s_mov_b32 {T5}, 0x3f800000
s_waitcnt vmcnt(14)''')
for p in range(8):
    for d in range(4):
        a(f'v_dot2_f32_bf16 v{72+2*d}, v{32+4*p+d}, {T4}, {"0" if p == 0 else "v%d" % (72+2*d)}')
        a(f'v_dot2_f32_bf16 v{73+2*d}, v{32+4*p+d}, {T5}, {"0" if p == 0 else "v%d" % (73+2*d)}')
a('v_add_f32 v64, v64, v65\nv_add_f32 v66, v66, v67\nv_add_f32 v64, v64, v66')
for i in range(4): a(f'v_permlane32_swap_b32 v{72+i}, v{76+i}')
a('v_mov_b32 v65, v64')
for i in range(4): a(f'v_add_f32 v{72+i}, v{72+i}, v{76+i}')
a(f'''v_permlane32_swap_b32 v65, v64
v_cvt_pk_bf16_f32 v72, v72, v73
v_cvt_pk_bf16_f32 v73, v74, v75
v_add_f32 v64, v64, v65
v_lshrrev_b32 v7, 1, v8
v_mov_b32 v65, v64
v_mul_u32_u24 v7, 80, v7
v_and_b32 v9, 1, v1
v_permlane16_swap_b32 v65, v64
v_lshl_add_u32 v7, v9, 4, v7
v_lshl_add_u32 v7, v3, 3, v7
s_mul_i32 {T6}, {KH}, 1280
s_lshl_b32 {T7}, {TT}, 5
s_add_u32 {T6}, {T6}, {T7}
s_add_u32 {T6}, {T6}, {L_KVT}
v_add_u32 v7, {T6}, v7
v_add_f32 v64, v64, v65
ds_write_b64 v7, v[72:73]
v_cvt_pk_bf16_f32 v64, v64, v64
s_lshl_b32 {T6}, {WV}, 5
s_add_u32 {T6}, {T6}, {L_Z}
v_lshlrev_b32 v9, 1, v10
v_add_u32 v9, {T6}, v9
ds_write_b16 v9, v64
; A-frag address: rho = l%32, h' = (rho/4)%2, d = 4*(rho/8) + rho%4
v_bfe_u32 v7, v1, 3, 2
v_and_b32 v4, 3, v1
v_lshl_add_u32 v7, v7, 2, v4
v_mul_u32_u24 v7, 80, v7
v_mul_u32_u24 v9, 1280, v3
v_add3_u32 v7, v7, v9, {L_KVT}
v_bfe_u32 v9, v1, 2, 1
v_cmp_eq_u32 vcc, v9, v3
v_mov_b32 v9, {L_ZERO}
v_lshlrev_b32 v10, 6, v3
v_cndmask_b32 v7, v9, v7, vcc
v_add_u32 v10, {L_Z}, v10
s_waitcnt lgkmcnt(0)
s_barrier'''.replace(f'v_add3_u32 v7, v7, v9, {L_KVT}', f'v_add_u32 v7, v7, v9\nv_add_u32 v7, {L_KVT}, v7'))
for s in range(4): a(f'ds_read_b128 {v(32+4*s,4)}, v7 offset:{16*s}')
for s in range(4): a(f'ds_read_b128 {v(48+4*s,4)}, v10 offset:{16*s}')
dma(8, 'v15', SWU, ('s52', 0), 16 * 2752, ('s53', S[2]))
a('s_waitcnt lgkmcnt(0)')
for s in range(4): a(f'{MF} v[64:79], {v(32+4*s,4)}, {v(152+4*s,4)}, {"0" if s == 0 else "v[64:79]"}')
a('v_mov_b32 v80, 0x358637bd')
for i in range(16): a(f'v_dot2_f32_bf16 v80, v{152+i}, v{48+i}, v80')
a('v_rcp_f32 v80, v80')
for i in range(16): a(f'v_mul_f32 v{64+i}, v{64+i}, v80')
for i in range(8): a(f'v_cvt_pk_bf16_f32 v{64+i}, v{64+2*i}, v{65+2*i}')
a(f'''s_lshl_b32 {T6}, {WV}, 15
s_lshl_b32 {T7}, {B}, 8
s_add_u32 {T6}, {T6}, {T7}
s_add_u32 {T6}, {T6}, {SZB}''')
dual([f'buffer_store_dwordx4 v[64:67], v2, {SWS}, {T6} offen', f'buffer_store_dwordx4 v[68:71], v2, {SWS}, {T6} offen offset:128'])
a(f'''s_lshl_b32 {T6}, {WV}, 6
s_lshl_b32 {T7}, {B}, 2
s_add_u32 {T6}, {T6}, {T7}
s_add_u32 {T6}, {T6}, {SLF}''')
flag_store(T6, OF)
ts()
unpack(104, 176, 24)
unpack(16, 168, 8)
a(f'''v_and_b32 v4, 3, v1
v_bfe_u32 v5, v1, 4, 1
v_lshlrev_b32 v5, 5, v5
v_and_b32 v6, 1, v1
v_lshl_add_u32 v5, v6, 4, v5
v_bfe_u32 v6, v1, 1, 1
v_lshl_add_u32 v5, v6, 3, v5
v_bfe_u32 v6, v1, 2, 2
v_lshl_add_u32 v5, v6, 6, v5
v_lshrrev_b32 v3, 5, v1
v_lshl_add_u32 v8, v3, 11, v5
s_cmp_eq_u32 {KH}, 0
s_cselect_b32 {T7}, {S[3] + 512}, {S[0]}
s_xor_b32 {T6}, {T7}, 512
v_add_u32 v9, {T7}, v8
v_add_u32 v8, {T6}, v8
v_and_b32 v7, 7, v1
v_lshlrev_b32 v7, 2, v7
s_lshl_b32 {T6}, {TILE}, 6
s_lshl_b32 {T7}, {KH}, 5
s_add_u32 {T6}, {T6}, {T7}
s_add_u32 {T6}, {T6}, {SLF}''')
poll_flag('v7', T6, OF)
ts()
a(f'''s_lshl_b32 {T6}, {TILE}, 15
s_lshl_b32 {T7}, {KH}, 11
s_add_u32 {T6}, {T6}, {T7}
s_add_u32 {T6}, {T6}, {SZB}''')
for ks in range(16):
    a(f'buffer_load_dwordx4 {ac(4*ks,4)}, v2, {SWS}, {T6} offen offset:{128*ks} sc1')
gemm_loop(16, [('v[48:63]', 'v9', 0), ('v[32:47]', 'v8', 0)], lambda ks: ac(4 * ks, 4), 80, 2, vm_after=0,
          koff=lambda ks: (ks // 2) * 4096 + (ks % 2) * 1024)
a(f'''v_lshlrev_b32 v7, 4, v1
s_lshl_b32 {T6}, {WV}, 12
s_add_u32 {T6}, {T6}, {S[4]}
s_xor_b32 {T7}, {T6}, 8192
v_add_u32 v8, {T6}, v7
v_add_u32 v9, {T7}, v7''')
for i in range(4): a(f'ds_write_b128 v8, {v(48+4*i,4)} offset:{1024*i}')
a('s_waitcnt lgkmcnt(0)\ns_barrier')
for i in range(4): a(f'ds_read_b128 {v(48+4*i,4)}, v9 offset:{1024*i}')
a('s_waitcnt lgkmcnt(0)')
for i in range(16): a(f'v_add_f32 v{32+i}, v{32+i}, v{48+i}')
for i in range(16): a(f'v_fmac_f32 v{16+i}, v{32+i}, v{104+i}')
a('v_add_f32 v64, v16, v17\nv_mul_f32 v65, v16, v16\nv_fmac_f32 v65, v17, v17')
for i in range(2, 16): a(f'v_add_f32 v64, v64, v{16+i}\nv_fmac_f32 v65, v{16+i}, v{16+i}')
a(f'''v_mov_b32 v68, v64
v_mov_b32 v69, v65
v_mov_b32 v66, {TAG}
v_permlane32_swap_b32 v68, v64
v_permlane32_swap_b32 v69, v65
v_mov_b32 v67, {TAG}
v_add_f32 v64, v64, v68
v_add_f32 v65, v65, v69
s_lshl_b32 {T6}, {RB}, 15
s_lshl_b32 {T7}, {TILE}, 13
s_add_u32 {T6}, {T6}, {T7}
s_add_u32 {T5}, {T6}, {ST}
s_lshl_b32 {T7}, {CT16}, 9
s_add_u32 {T6}, {T5}, {T7}
s_mov_b32 exec_hi, 0''')
dual([f'buffer_store_dwordx4 v[64:67], v7, {SWS}, {T6} offen'])
a('s_mov_b32 exec_hi, -1')
ts()
dma(8, 'v12', SWG, ('s52', 1024), 16 * 2752, ('s53', S[3]))
dma(8, 'v15', SWU, ('s52', 1024), 16 * 2752, ('s53', S[0]))
a(f'''v_and_b32 v7, 31, v1
v_lshlrev_b32 v7, 4, v7
v_lshl_add_u32 v7, v3, 12, v7
s_mov_b32 {CNT}, 0
L_sp:''')
for p in range(8): a(f'buffer_load_dwordx4 {v(32+4*p,4)}, v7, {SWS}, {T5} offen offset:{512*p} sc1')
a(f'''s_add_u32 {CNT}, {CNT}, 1
s_cmp_gt_u32 {CNT}, {SPIN}
s_cbranch_scc1 L_se
s_waitcnt vmcnt(0)
v_min3_u32 v64, v34, v38, v42
v_max3_u32 v65, v34, v38, v42
v_min3_u32 v64, v64, v46, v50
v_max3_u32 v65, v65, v46, v50
v_min3_u32 v64, v64, v54, v58
v_max3_u32 v65, v65, v54, v58
v_min_u32 v64, v64, v62
v_max_u32 v65, v65, v62
v_cmp_ne_u32 vcc, {TAG}, v64
v_cmp_ne_u32 s[4:5], {TAG}, v65
s_nop 1
s_or_b64 vcc, vcc, s[4:5]
s_cbranch_vccnz L_sp
L_se:
s_waitcnt vmcnt(0)''')
ts()
for p in range(1, 8): a(f'v_add_f32 v32, v32, v{32+4*p}\nv_add_f32 v33, v33, v{33+4*p}')
a(f'''v_mov_b32 v34, v32
v_mov_b32 v35, v33
s_nop 0
v_permlane32_swap_b32 v34, v32
v_permlane32_swap_b32 v35, v33
v_add_f32 v32, v32, v34
v_add_f32 v33, v33, v35
v_mul_f32 v32, {1/512}, v32
v_mov_b32 v34, 0x3727c5ac
v_fmac_f32 v34, {1/512}, v33
v_fma_f32 v34, -v32, v32, v34
v_max_f32 v34, 0x3727c5ac, v34
v_rsq_f32 v34, v34
s_nop 0
v_mul_f32 v32, v32, v34''')
for i in range(16): a(f'v_fma_f32 v{48+i}, v{16+i}, v34, -v32')
for i in range(16): a(f'v_fmac_f32 v{120+i}, v{48+i}, v{136+i}')
for i in range(8): a(f'v_cvt_pk_bf16_f32 v{48+i}, v{120+2*i}, v{121+2*i}')
a(f'''s_lshl_b32 {T6}, {TILE}, 15
s_lshl_b32 {T7}, {CT16}, 8
s_add_u32 {T6}, {T6}, {T7}
s_add_u32 {T6}, {T6}, {SXB}''')
dual([f'buffer_store_dwordx4 v[48:51], v2, {SWS}, {T6} offen', f'buffer_store_dwordx4 v[52:55], v2, {SWS}, {T6} offen offset:128'])
a(f'''s_lshl_b32 {T6}, {TILE}, 6
s_lshl_b32 {T7}, {CT16}, 2
s_add_u32 {T6}, {T6}, {T7}
s_add_u32 {T6}, {T6}, {SLF}''')
flag_store(T6, H2F)
a(f'''v_and_b32 v7, 15, v1
v_lshlrev_b32 v7, 2, v7
s_lshl_b32 {T6}, {WV}, 6
s_add_u32 {T6}, {T6}, {SLF}''')
poll_flag('v7', T6, H2F)
ts()
a(f's_lshl_b32 {T6}, {WV}, 15\ns_add_u32 {T6}, {T6}, {SXB}')
for ks in range(32):
    a(f'buffer_load_dwordx4 {ac(4*ks,4)}, v2, {SWS}, {T6} offen offset:{128*ks} sc1')
a(f'''s_and_b32 {T6}, {B}, 7
s_lshl_b32 {T6}, {T6}, 7
s_lshl_b32 {T7}, {WV}, 15
s_add_u32 s55, {T6}, {T7}
v_lshrrev_b32 v3, 5, v1
v_lshl_add_u32 v10, v3, 10, v5
s_lshl_b32 {T6}, {KH}, 9
s_xor_b32 {T7}, {T6}, 512
v_add_u32 v11, {T7}, v10
v_add_u32 v10, {T6}, v10
; v14 = GEMM3 lane part: (8hf + rr)*64 + (2h' + a%2)*8 ; v6 = hh store address
v_and_b32 v14, 0xffffffdf, v5
v_lshl_add_u32 v14, v3, 9, v14
v_bfe_u32 v6, v1, 2, 3
v_lshlrev_b32 v6, 8, v6
v_lshl_add_u32 v6, v3, 6, v6
v_and_b32 v4, 3, v1
v_lshl_add_u32 v6, v4, 4, v6
s_mov_b32 s6, 0xffff0000
s_mov_b32 s7, 0xffff0000''')
def wdreg(n, k, c):
    r = 16 * n + 8 * k + 4 * c
    return ('a', 128 + r) if n < 8 else ('v', 208 + r - 128)
def stage_dma(n, lg, lc):
    dma(4, 'v13', SWD, ('s55', n * 131072), 8192, (lg, lc))
def stage_read(n, va0, va1, off):
    for k in range(2):
        for c in range(2):
            f, r = wdreg(n, k, c)
            for u in range(2):
                a(f'ds_read_b64_tr_b16 {f}[{r+2*u}:{r+2*u+1}], {va0 if c == 0 else va1} offset:{off + 2048*k + 256*u}')
def g3pass(i, gs, us, vm_after):
    a(f'''v_mov_b32 v7, {gs}
v_mov_b32 v8, {us + 32}
v_mov_b32 v9, {gs + 32}
v_mov_b32 v4, {us}
v_cndmask_b32 v8, v7, v8, s[6:7]
v_cndmask_b32 v9, v9, v4, s[6:7]
v_add_u32 v8, v8, v14
v_add_u32 v9, v9, v14''')
    gemm_loop(32, [('v[32:47]', 'v8', 0), ('v[48:63]', 'v9', 0)], lambda ks: ac(4 * ks, 4), 64, 2, vm_after=vm_after)
    for t in range(2):
        g = 32 + 16 * t
        for r in range(8): a(f'v_mul_f32 v{g+r}, {NLOG2E}, v{g+r}')
        for r in range(8): a(f'v_exp_f32 v{g+r}, v{g+r}')
        for r in range(8): a(f'v_add_f32 v{g+r}, 1.0, v{g+r}')
        for r in range(8): a(f'v_rcp_f32 v{g+r}, v{g+r}')
        for r in range(8): a(f'v_mul_f32 v{g+r}, v{g+r}, v{g+8+r}')
        for r in range(4): a(f'v_cvt_pk_bf16_f32 v{g+r}, v{g+2*r}, v{g+2*r+1}')
    a(f'''s_lshl_b32 {T6}, {B}, 13
s_lshl_b32 {T7}, {WV}, 11
s_add_u32 {T6}, {T6}, {T7}
s_add_u32 {T6}, {T6}, {SZB}
s_add_u32 {T6}, {T6}, {i * 131072}''')
    dual([f'buffer_store_dwordx4 v[32:35], v6, {SWS}, {T6} offen', f'buffer_store_dwordx4 v[48:51], v6, {SWS}, {T6} offen offset:128'])
    a(f'''s_lshl_b32 {T6}, {WV}, 6
s_lshl_b32 {T7}, {B}, 2
s_add_u32 {T6}, {T6}, {T7}
s_add_u32 {T6}, {T6}, {SLF}''')
    flag_store(T6, HHF + 256 * i)
a(f's_add_u32 {T6}, s53, {S[4]}\nv_add_u32 v88, {T6}, v10\nv_add_u32 v89, {T6}, v11')
a('s_barrier')
stage_dma(0, 's53', S[4]); stage_dma(1, 's53', S[4] + 4096)
g3pass(0, S[1], S[2], 8)
stage_read(0, 'v88', 'v89', 0); stage_read(1, 'v88', 'v89', 4096)
a('s_waitcnt lgkmcnt(0)\ns_barrier')
ts()
a(f's_cmp_ge_u32 {B}, 11\ns_cbranch_scc1 L_np2')
dma(8, 'v12', SWG, ('s52', 2048), 16 * 2752, ('s53', S[1]))
dma(8, 'v15', SWU, ('s52', 2048), 16 * 2752, ('s53', S[2]))
a('L_np2:')
stage_dma(2, 's53', S[4]); stage_dma(3, 's53', S[4] + 4096)
g3pass(1, S[3], S[0], None)
stage_read(2, 'v88', 'v89', 0); stage_read(3, 'v88', 'v89', 4096)
a('s_waitcnt lgkmcnt(0)\ns_barrier')
ts()
a(f's_cmp_ge_u32 {B}, 11\ns_cbranch_scc1 L_np3')
g3pass(2, S[1], S[2], None)
a('s_barrier\nL_np3:')
ts()
a(f's_lshl_b32 s53, {WV}, 15\nv_add_u32 v88, s53, v10\nv_add_u32 v89, s53, v11')
for n in range(4, 11): stage_dma(n, 's53', (n - 4) * 4096)
a(f'''v_lshrrev_b32 v3, 5, v1
v_lshlrev_b32 v7, 5, v3
s_lshl_b32 {T6}, {CT16}, 7
s_add_u32 {T6}, {T6}, {MOD + 5*2048}''')
for s in range(2):
    for g in range(2):
        a(f'buffer_load_dwordx2 {v(64+4*s+2*g,2)}, v7, {SWS}, {T6} offen offset:{64*s + 16*g} sc1')
a(f'''v_lshrrev_b32 v7, 3, v1
v_and_b32 v4, 3, v1
v_lshl_add_u32 v8, v7, 2, v4        ; n
v_lshlrev_b32 v8, 2, v8
v_add_u32 v8, {WV}, v8              ; P
v_lshlrev_b32 v7, 8, v7
v_bfe_u32 v9, v1, 2, 1
v_lshl_add_u32 v7, v9, 6, v7
v_lshl_add_u32 v7, v4, 4, v7
v_cmp_gt_u32 vcc, 43, v8
s_and_b32 {T6}, {TILE}, 2
s_lshl_b32 {T6}, {T6}, 6
v_cndmask_b32 v7, 0, v7, vcc
s_lshl_b32 {T7}, {WV}, 2
s_add_u32 {T6}, {T6}, {T7}
s_add_u32 {T6}, {T6}, {SLF}''')
poll_flag('v7', T6, HHF)
ts()
for n in range(4, 11): stage_read(n, 'v88', 'v89', (n - 4) * 4096)
a(f'''s_lshl_b32 {T6}, {TILE}, 11
s_xor_b32 {T7}, {T6}, 2048
v_add_u32 v8, {T6}, v6
v_add_u32 v9, {T7}, v6
s_lshl_b32 {T6}, {WV}, 13
s_add_u32 {T6}, {T6}, {SZB}
s_waitcnt lgkmcnt(0)''')
def hhreg(n, k, t):
    r = 16 * n + 8 * k + 4 * t
    return f'v[{80+r}:{83+r}]' if n < 8 else f'a[{r-128}:{r-125}]'
for n in range(11):
    for k in range(2):
        for t in range(2):
            a(f'buffer_load_dwordx4 {hhreg(n,k,t)}, {"v8" if t == 0 else "v9"}, {SWS}, {T6} offen offset:{128*k} sc1')
    a(f's_add_u32 {T6}, {T6}, 32768')
for n in range(11):
    if n == 10: a(f's_cmp_eq_u32 {WV}, 3\ns_cbranch_scc1 L_g4e')
    for k in range(2):
        a(f's_waitcnt vmcnt({42 - 4*n - 2*k})')
        for t in range(2):
            for c in range(2):
                f, r = wdreg(n, k, c)
                acc = ac(64 + 16 * (2 * c + t), 16)
                a(f'{MF} {acc}, {f}[{r}:{r+3}], {hhreg(n,k,t)}, {"0" if n == 0 and k == 0 else acc}')
a('L_g4e:\ns_waitcnt vmcnt(0)\ns_barrier')
ts()
a(f'v_lshlrev_b32 v7, 4, v1\ns_nop 7')
for x in range(1, 4):
    a(f's_xor_b32 {T6}, {WV}, {x}\ns_lshl_b32 {T6}, {T6}, 14\nv_add_u32 v8, {T6}, v7')
    for i in range(4): a(f'ds_write_b128 v8, {ac(64+16*x+4*i,4)} offset:{4096*x + 1024*i}')
unpack(104, 64, 8)
for i in range(16): a(f'v_accvgpr_read_b32 v{32+i}, a{64+i}')
a(f's_lshl_b32 {T6}, {WV}, 14\nv_add_u32 v8, {T6}, v7\ns_waitcnt lgkmcnt(0)\ns_barrier')
for x in range(1, 4):
    for i in range(4): a(f'ds_read_b128 {v(32+16*x+4*i,4)}, v8 offset:{4096*x + 1024*i}')
for x in range(1, 4):
    a(f's_waitcnt lgkmcnt({4*(3-x)})')
    for i in range(16): a(f'v_add_f32 v{32+i}, v{32+i}, v{32+16*x+i}')
for i in range(16): a(f'v_fmac_f32 v{16+i}, v{32+i}, v{104+i}')
for i in range(8): a(f'v_cvt_pk_bf16_f32 v{16+i}, v{16+2*i}, v{17+2*i}')
a(f'''v_and_b32 v8, 31, v1
v_mul_u32_u24 v8, 144, v8
v_lshl_add_u32 v8, v3, 4, v8
s_mul_i32 {T6}, {TT}, {32*144}
s_lshl_b32 {T7}, {KH}, 6
s_add_u32 {T6}, {T6}, {T7}
s_add_u32 {T6}, {T6}, {S[4]}
v_add_u32 v8, {T6}, v8
ds_write_b128 v8, v[16:19]
ds_write_b128 v8, v[20:23] offset:32
v_lshrrev_b32 v9, 3, v1
v_and_b32 v10, 7, v1
v_mul_u32_u24 v8, 144, v9
v_lshl_add_u32 v8, v10, 4, v8
s_mul_i32 {T6}, {WV}, {16*144}
s_add_u32 {T6}, {T6}, {S[4]}
v_add_u32 v8, {T6}, v8
v_lshlrev_b32 v9, 10, v9
v_lshl_add_u32 v9, v10, 4, v9
s_lshl_b32 {T6}, {RB}, 17
s_lshr_b32 {T7}, {B}, 3
s_lshl_b32 {T7}, {T7}, 16
s_add_u32 {T6}, {T6}, {T7}
s_lshl_b32 {T7}, {WV}, 14
s_add_u32 {T6}, {T6}, {T7}
s_and_b32 {T7}, {B}, 7
s_lshl_b32 {T7}, {T7}, 7
s_add_u32 {T6}, {T6}, {T7}
s_add_u32 {T7}, {T6}, 8192
s_waitcnt lgkmcnt(0)
s_barrier
ds_read_b128 v[32:35], v8
ds_read_b128 v[36:39], v8 offset:{8*144}
s_waitcnt lgkmcnt(1)
buffer_store_dwordx4 v[32:35], v9, {SOUT}, {T6} offen sc1
s_waitcnt lgkmcnt(0)
buffer_store_dwordx4 v[36:39], v9, {SOUT}, {T7} offen sc1''')
if DIAG:
    a('s_waitcnt vmcnt(0)')
    ts()
    a('v_mov_b32 v3, 0')
    for i in range(22): a(f'v_writelane_b32 v3, s{80+i}, {i}')
    a(f'v_writelane_b32 v3, {LOC}, 22\nv_writelane_b32 v3, {XCC}, 23')
    a(f'''s_lshl_b32 {T6}, s2, 2
s_add_u32 {T6}, {T6}, {WV}
s_lshl_b32 {T6}, {T6}, 8
s_add_u32 {T6}, {T6}, {DG}
v_lshlrev_b32 v4, 2, v1
buffer_store_dword v3, v4, {SWS}, {T6} offen''')
a('L_end:\ns_endpgm')

body = a.resolve()
hdr = open('cdna_kernels/' + NAME + '.s.ref').read().split('; Override')[0]
txt = f"""{hdr}; @launch grid=(256,1,1) block=(256,1,1) lds=163840
.amdgcn_target "amdgcn-amd-amdhsa--gfx950"
.text
.globl {NAME}_kernel
.p2align 8
.type {NAME}_kernel,@function
{NAME}_kernel:
{body}.section .rodata,"a"
.p2align 6
.amdhsa_kernel {NAME}_kernel
  .amdhsa_next_free_vgpr 512
  .amdhsa_next_free_sgpr 102
  .amdhsa_accum_offset 256
  .amdhsa_group_segment_fixed_size 0
  .amdhsa_kernarg_size 104
  .amdhsa_user_sgpr_count 2
  .amdhsa_user_sgpr_kernarg_segment_ptr 1
  .amdhsa_system_sgpr_workgroup_id_x 1
.end_amdhsa_kernel
"""
open(OUT, 'w').write(txt)
print('instrs', sum(1 for x in a.out if x.states), 'ts', tsn[0])
```

```python
import re

TRANS = ('v_exp_f32', 'v_log_f32', 'v_rcp_f32', 'v_rsq_f32', 'v_sqrt_f32', 'v_sin_f32', 'v_cos_f32')
REG = re.compile(r'\b([vas])(\d+)\b|\b([vas])\[(\d+):(\d+)\]|\b(vcc_lo|vcc_hi|vcc|exec_lo|exec_hi|exec|m0|scc)\b')

def regs_of(tok):
    out = set()
    for m in REG.finditer(tok):
        if m.group(1):
            out.add((m.group(1), int(m.group(2))))
        elif m.group(3):
            for i in range(int(m.group(4)), int(m.group(5)) + 1):
                out.add((m.group(3), i))
        else:
            n = m.group(6)
            if n.startswith('vcc'): out.add(('s', 'vcc'))
            elif n.startswith('exec'): out.add(('s', 'exec'))
            else: out.add(('s', n))
    return out

class Ins:
    def __init__(self, text):
        self.text = text
        t = text.split(';')[0].strip()
        self.label = None
        self.op = None
        self.states = 1
        self.dst = set(); self.src = set()
        self.kind = 'other'
        self.srcc = set(); self.ab = set()
        self.passes = 0
        self.dpp = False
        self.sdata = set()
        if t.endswith(':'):
            self.label = t[:-1]; self.states = 0; self.kind = 'label'; return
        if t == '' or t.startswith('.'):
            self.states = 0; self.kind = 'dir'; return
        parts = t.split(None, 1)
        op = parts[0]; self.op = op
        rest = parts[1] if len(parts) > 1 else ''
        ops = []; depth = 0; cur = ''
        for ch in rest:
            if ch == '[': depth += 1
            if ch == ']': depth -= 1
            if ch == ',' and depth == 0:
                ops.append(cur.strip()); cur = ''
            else: cur += ch
        if cur.strip(): ops.append(cur.strip())
        mods = ''
        if ops:
            l = ops[-1].split(None, 1)
            if len(l) > 1:
                ops[-1] = l[0]; mods = l[1]
        self.ops = ops; self.mods = mods
        R = [regs_of(o) for o in ops]
        allr = set().union(*R) if R else set()
        if op == 's_nop':
            self.states = int(ops[0], 0) + 1; self.kind = 'nop'; return
        if op.startswith('v_mfma'):
            self.kind = 'mfma'
            self.passes = 8 if '32x32x16' in op else 4 if '16x16x32' in op else None
            assert self.passes
            self.dst = R[0]; self.ab = R[1] | R[2]; self.srcc = R[3]; self.src = self.ab | self.srcc
            return
        if op.startswith('v_'):
            self.kind = 'valu'
            self.dpp = ('quad_perm' in mods or 'row_' in mods or 'wave_' in mods or op.endswith('_dpp'))
            if op.startswith('v_permlane') and 'swap' in op:
                self.dst = R[0] | R[1]; self.src = R[0] | R[1]
            elif op.startswith('v_cmp'):
                self.dst = R[0]; self.src = set().union(*R[1:])
            elif op.startswith(('v_add_co', 'v_sub_co', 'v_addc_co', 'v_subb_co')):
                self.dst = R[0] | R[1]; self.src = set().union(*R[2:])
            else:
                self.dst = R[0]; self.src = set().union(*R[1:]) if len(R) > 1 else set()
                if op.startswith(('v_fmac', 'v_mac', 'v_dot2c', 'v_writelane', 'v_pk_fmac')) or self.dpp:
                    self.src |= R[0]
                if op.startswith('v_cndmask') and len(ops) == 3:
                    self.src |= {('s', 'vcc')}
            return
        if op.startswith('ds_'):
            self.kind = 'ds'
            if op.startswith(('ds_read', 'ds_bpermute', 'ds_permute', 'ds_swizzle')):
                self.dst = R[0]; self.src = set().union(*R[1:])
            else:
                self.src = allr
            return
        if op.startswith(('buffer_', 'global_')):
            self.kind = 'vmem'
            if 'wbl2' in op or op == 'buffer_inv': return
            islds = re.search(r'\blds\b', mods) is not None
            if 'load' in op and not islds:
                self.dst = R[0]; self.src = set().union(*R[1:])
            elif 'load' in op:
                self.src = allr | {('s', 'm0')}; self.kind = 'vmem'; self.lds = True
            else:
                self.src = allr
                if 'x4' in op or 'x3' in op:
                    self.sdata = R[0] if op.startswith('buffer') else R[1]
            return
        if op.startswith('s_'):
            self.kind = 'salu'
            if op.startswith(('s_cbranch', 's_branch')):
                self.kind = 'branch'; self.target = ops[0]; return
            if op.startswith(('s_waitcnt', 's_barrier', 's_endpgm', 's_sleep', 's_setprio')): return
            if op.startswith(('s_cmp', 's_bitcmp')):
                self.src = allr; return
            self.dst = R[0] if R else set(); self.src = set().union(*R[1:]) if len(R) > 1 else set()
            if 'saveexec' in op: self.dst = self.dst | {('s', 'exec')}
            return
        raise ValueError('unknown op ' + text)

def isv(rs): return {r for r in rs if r[0] in 'va'}
def iss(rs): return {r for r in rs if r[0] == 's'}

def need(p, c):
    n = 0
    if p.kind == 'valu':
        pv = isv(p.dst); ps = iss(p.dst)
        isdot = p.op.startswith('v_dot')
        if c.kind == 'mfma' and pv & c.src: n = max(n, 3 if isdot else 2)
        if c.kind == 'valu':
            if c.dpp and pv & c.src: n = max(n, 2)
            if c.op.startswith('v_permlane') and pv & c.src: n = max(n, 2)
            if c.op.startswith(('v_readlane', 'v_readfirstlane')) and pv & c.src: n = max(n, 1)
            if p.op in TRANS and pv & c.src: n = max(n, 1)
            if ps & c.src:
                n = max(n, 4 if c.op.startswith(('v_readlane', 'v_writelane')) else 2)
            if ('sdwa' in p.op or 'op_sel' in p.mods or 'dst_sel' in p.mods) and pv & (c.src | c.dst): n = max(n, 1)
        if isdot and pv & (c.src | c.dst):
            if c.op == p.op:
                ab = set().union(*[regs_of(o) for o in c.ops[1:3]])
                if pv & ab: n = max(n, 3)
            else:
                n = max(n, 3)
        if c.kind == 'vmem' and ps & c.src: n = max(n, 5)
        if c.kind == 'salu' and ps & c.src: n = max(n, 1)
    if p.kind == 'mfma':
        big = 12 if p.passes == 8 else 8
        if c.kind == 'mfma':
            if p.dst & c.ab: n = max(n, big)
            if p.dst & c.srcc:
                if not (p.dst == c.srcc and p.passes == c.passes): n = max(n, big - 2)
            elif p.dst & c.dst: n = max(n, big)
        elif c.kind in ('valu', 'ds', 'vmem'):
            if p.dst & (c.src | c.dst): n = max(n, big)
            if c.kind == 'valu' and p.srcc & c.dst: n = max(n, 7 if p.passes == 8 else 3)
    if p.kind == 'vmem' and p.sdata:
        if c.kind in ('valu', 'mfma') and p.sdata & c.dst: n = max(n, 2)
        elif p.sdata & c.dst: n = max(n, 1)
    if p.kind == 'salu' and ('s', 'm0') in p.dst and c.kind == 'vmem' and ('s', 'm0') in c.src: n = max(n, 1)
    return n

class Asm:
    def __init__(self):
        self.ins = []
        self.uid = 0
        self.vm = 0
        self.cond = 0
    def __call__(self, text):
        for line in text.split('\n'):
            line = line.strip()
            if not line or line.startswith(';'): continue
            x = Ins(line)
            self.ins.append(x)
            if x.kind == 'vmem' and not self.cond: self.vm += 1
    def mark(self):
        return self.vm
    def vmw(self, m):
        n = self.vm - m
        assert n >= 0
        return min(n, 63)
    def lab(self, base='L'):
        self.uid += 1
        return f'{base}_{self.uid}'
    def resolve(self):
        out = []
        W = 14
        for c in self.ins:
            if c.states and c.kind not in ('nop',):
                dist = 0; req = 0
                for p in reversed(out):
                    if p.kind == 'branch' and p.op == 's_branch': break
                    if p.op == 's_endpgm': break
                    if dist >= W: break
                    r = need(p, c) - dist
                    if r > req: req = r
                    dist += p.states
                while req > 0:
                    k = min(req, 16)
                    out.append(Ins(f's_nop {k-1}')); req -= k
            out.append(c)
        pos = {x.label: i for i, x in enumerate(out) if x.label}
        for i, b in enumerate(out):
            if b.kind != 'branch': continue
            t = pos[b.target]
            hist = []; dist = 0
            for p in reversed(out[:i + 1]):
                if dist >= W: break
                hist.append((p, dist)); dist += p.states
            d2 = 0
            for c in out[t:]:
                if d2 >= W: break
                if c.states and c.kind != 'nop':
                    for p, d in hist:
                        if need(p, c) > d + d2:
                            raise SystemExit(f'branch hazard: [{p.text}] -> {b.text} -> [{c.text}]')
                if c.op in ('s_branch', 's_endpgm'): break
                d2 += c.states
        self.out = out
        return '\n'.join(('' if x.label else '  ') + x.text for x in out) + '\n'
```

```python
import sys
sys.path.insert(0, 'mk')
from asmlib import Asm
NAME = 'adaLN_cond__linear_kernel_hedgehog__glu_gated_glu__prompt'
DIAG = 'diag' in sys.argv
FORCE_GLOBAL = 'glob' in sys.argv
OUT = sys.argv[1]
OPT = dict(x.split('=') for x in sys.argv if '=' in x)
def opt(k, d): return type(d)(OPT.get(k, d))

XCCF = 0x1000; LF = 0xC000; ST = 0x14000; KV = 0x94000; MOD = 0x154000; XB = 0x160000; ZB = 0x360000; ZS = 0x56000
MPS = 768 * 16
DG = 0x900000
HF, OF, H2F, HHF = 0, 256, 512, 768
S = [0, 32768, 65536, 98304, 131072]
L_WM = S[4]; L_PV = S[4]; L_XI = S[4] + 16384; L_WPHI = S[4] + 24576; L_SILU = S[4] + 25600; L_LN = S[4] + 26624; L_PAR = S[4] + 26880
L_KVT = S[4] + 29696; L_Z = S[4] + 32256; L_ZERO = S[4] + 32384
SX, SWQKV, SWPHI, SWO, SWG, SWU, SWD, SC, SWM, SOUT, SWS = [f's[{8+4*i}:{11+4*i}]' for i in range(11)]
srd_info = [(40, 72, 3145728), (36, 64, 1024), (8, 0, 2097152), (48, 96, 268435456), (12, 8, 1572864), (16, 16, 16384), (20, 24, 524288),
            (24, 40, 1409024), (28, 48, 1409024), (32, 56, 1409024), (44, 80, 2097152)]
TAG, LOC, RB, B, WV, XCC, SLF, SXB, SZB, CNT = 's56', 's57', 's58', 's59', 's60', 's61', 's62', 's63', 's64', 's65'
T0, T1, T2, T3, T4, T5, T6, T7 = [f's{66+i}' for i in range(8)]
TT, KH, TILE, CT16 = 's74', 's75', 's76', 's77'
SL2E = 's3'
IX = 's52'; SW8K = 's53'; SKV = 's54'; SWOFF = 's55'
SGU = 's4'
SPIN = 20000
LOG2E = '0x3fb8aa3b'; NLOG2E = '0xbfb8aa3b'
JUNK = 'v255'

a = Asm()
tsn = [0]
names = ['start']
def ts(name='?'):
    if DIAG:
        i = tsn[0]; tsn[0] += 1
        assert i < 56
        names.append(name)
        a(f's_memtime s[78:79]\ns_waitcnt lgkmcnt(0)\nv_writelane_b32 v0, s78, {i}')
        if name == OPT.get('stop'): a('s_branch L_diag')

def v(i, n=1): return f'v{i}' if n == 1 else f'v[{i}:{i+n-1}]'
def ac(i, n=1): return f'a{i}' if n == 1 else f'a[{i}:{i+n-1}]'

class cond:
    def __init__(self, test, skip='scc1'):
        self.l = a.lab('C'); a(test); a(f's_cbranch_{skip} {self.l}')
    def __enter__(self): a.cond += 1
    def __exit__(self, *e): a.cond -= 1; a(f'{self.l}:')

def dual(stores):
    l1, l2 = a.lab(), a.lab()
    a(f's_cmp_eq_u32 {LOC}, 0\ns_cbranch_scc1 {l1}')
    for s in stores: a(s + ' nt')
    a(f's_branch {l2}\n{l1}:')
    a.cond += 1
    for s in stores: a(s + ' sc1')
    a.cond -= 1
    a(f'{l2}:')

def flag_store(soff, imm=0, local=True, m=None):
    a(f'v_mov_b32 v3, 0\nv_mov_b32 v4, {TAG}\ns_waitcnt vmcnt({0 if m is None else a.vmw(m)})\ns_mov_b64 exec, 1')
    st = f'buffer_store_dword v4, v3, {SWS}, {soff} offen offset:{imm}'
    if local: dual([st])
    else: a(st + ' sc1')
    a('s_mov_b64 exec, -1')

def poll(loads, check):
    l, e = a.lab('P'), a.lab('PE')
    a(f's_mov_b32 {CNT}, 0\n{l}:')
    for x in loads: a(x)
    a(f's_add_u32 {CNT}, {CNT}, 1\ns_cmp_gt_u32 {CNT}, {SPIN}\ns_cbranch_scc1 {e}\ns_waitcnt vmcnt(0)')
    a(check)
    a(f's_cbranch_vccnz {l}\n{e}:\ns_waitcnt vmcnt(0)')

def poll_flag(vaddr, soff, imm=0, vt='v4'):
    poll([f'buffer_load_dword {vt}, {vaddr}, {SWS}, {soff} offen offset:{imm} sc1'], f'v_cmp_ne_u32 vcc, {TAG}, {vt}')

def tagcheck(regs, t0, t1):
    r = list(regs)
    s = ''
    x = r.pop(0)
    s += f'v_xor_b32 v{t0}, {TAG}, v{x}\n'
    while r:
        x = r.pop(0)
        s += f'v_xor_b32 v{t1}, {TAG}, v{x}\nv_or_b32 v{t0}, v{t0}, v{t1}\n'
    return s + f'v_cmp_ne_u32 vcc, 0, v{t0}'

def dma(n, vaddr, srd, soff0, sstep, lds0, tmp=T0, lstep=1024):
    sg, sc = soff0; lg, lc = lds0
    a(f's_add_u32 {tmp}, {sg}, {sc}' if sg else f's_mov_b32 {tmp}, {sc}')
    a(f's_add_u32 m0, {lg}, {lc}' if lg else f's_mov_b32 m0, {lc}')
    for i in range(n):
        a(f'buffer_load_dwordx4 {vaddr}, {srd}, {tmp} offen lds')
        if i + 1 < n:
            a(f's_add_u32 m0, m0, {lstep}\ns_add_u32 {tmp}, {tmp}, {sstep}')

MF = 'v_mfma_f32_32x32x16_bf16'
MF16 = 'v_mfma_f32_16x16x32_bf16'

def softmax16(p, tmp, out):
    mx, mn, sp, sn = tmp + 32, tmp + 33, tmp + 34, tmp + 35
    a(f'v_max3_f32 v{mx}, v{p}, v{p+1}, v{p+2}\nv_min3_f32 v{mn}, v{p}, v{p+1}, v{p+2}')
    for i in range(3, 15, 2):
        a(f'v_max3_f32 v{mx}, v{mx}, v{p+i}, v{p+i+1}\nv_min3_f32 v{mn}, v{mn}, v{p+i}, v{p+i+1}')
    a(f'v_max_f32 v{mx}, v{mx}, v{p+15}\nv_min_f32 v{mn}, v{mn}, v{p+15}')
    a(f'v_mul_f32 v{mx}, {SL2E}, v{mx}\nv_mul_f32 v{mn}, {SL2E}, v{mn}')
    for i in range(16):
        a(f'v_fma_f32 v{tmp+i}, v{p+i}, {SL2E}, -v{mx}\nv_fma_f32 v{tmp+16+i}, -v{p+i}, {SL2E}, v{mn}')
    for i in range(16):
        a(f'v_exp_f32 v{tmp+i}, v{tmp+i}\nv_exp_f32 v{tmp+16+i}, v{tmp+16+i}')
    a(f'v_add_f32 v{sp}, v{tmp}, v{tmp+1}\nv_add_f32 v{sn}, v{tmp+16}, v{tmp+17}')
    for i in range(2, 16):
        a(f'v_add_f32 v{sp}, v{sp}, v{tmp+i}\nv_add_f32 v{sn}, v{sn}, v{tmp+16+i}')
    a(f'v_rcp_f32 v{sp}, v{sp}\nv_rcp_f32 v{sn}, v{sn}')
    for i in range(16):
        a(f'v_mul_f32 v{tmp+i}, v{tmp+i}, v{sp}')
    for i in range(16):
        a(f'v_mul_f32 v{tmp+16+i}, v{tmp+16+i}, v{sn}')
    for i in range(16):
        a(f'v_cvt_pk_bf16_f32 v{out+i}, v{tmp+2*i}, v{tmp+2*i+1}')

def unpack(dst, src, n):
    for i in range(n):
        a(f'v_lshlrev_b32 v{dst+2*i}, 16, v{src+i}\nv_and_b32 v{dst+2*i+1}, 0xffff0000, v{src+i}')

def frag_loads(n, soff, dst, k0=0):
    marks = []
    for ks in range(n):
        if ks and ks % 4 == 0: a(f's_add_u32 {soff}, {soff}, 4096')
        a(f'buffer_load_dwordx4 {dst(ks)}, v2, {SWS}, {soff} offen offset:{1024*(ks%4)} sc1')
        marks.append(a.mark())
    return marks

def gemm_loop(nk, tiles, bfrag, ring, depth, marks=None, koff=lambda ks: 1024 * ks, extra=None):
    nt = len(tiles)
    def rd(ks):
        for t, (acc, va, bo) in enumerate(tiles):
            r = ring + ((ks % (depth + 1)) * nt + t) * 4
            a(f'ds_read_b64_tr_b16 {v(r,2)}, {va} offset:{bo + koff(ks)}\nds_read_b64_tr_b16 {v(r+2,2)}, {va} offset:{bo + koff(ks) + 256}')
    for ks in range(min(depth, nk)): rd(ks)
    for ks in range(nk):
        if ks + depth < nk: rd(ks + depth)
        left = min(depth, nk - 1 - ks) * nt * 2
        w = f'lgkmcnt({min(left, 15)})'
        if marks is not None: w = f'vmcnt({a.vmw(marks[ks])}) ' + w
        a(f's_waitcnt {w}')
        for t, (acc, va, bo) in enumerate(tiles):
            r = ring + ((ks % (depth + 1)) * nt + t) * 4
            a(f'{MF} {acc}, {v(r,4)}, {bfrag(ks)}, {"0" if ks == 0 else acc}')
        if extra: extra(ks)

a(f's_cmp_ge_u32 s2, 256\ns_cbranch_scc1 L_end')
for (r, off, sz) in srd_info[:5]:
    a(f's_load_dwordx2 s[{r}:{r+1}], s[0:1], {off}')
if DIAG:
    a('s_memtime s[78:79]\ns_memrealtime s[100:101]')
a(f'''s_getpc_b64 s[4:5]
L_pc:
s_lshr_b32 {IX}, s2, 3
s_mul_i32 s6, {IX}, NPF*128
v_lshlrev_b32 v254, 7, v0
v_add_u32 v254, s6, v254
v_cmp_gt_u32 vcc, NPF, v0
s_and_saveexec_b64 s[6:7], vcc
s_cbranch_execz L_npf''')
a.cond += 1
a(f'global_load_dword {JUNK}, v254, s[4:5]')
a.cond -= 1
a(f'''L_npf:
s_mov_b64 exec, -1
v_and_b32 v1, 63, v0
v_lshrrev_b32 v3, 6, v0
s_and_b32 {T0}, s2, 7
v_readfirstlane_b32 {WV}, v3
s_lshr_b32 {T2}, {IX}, 4
s_lshl_b32 {RB}, {T0}, 1
s_add_u32 {RB}, {RB}, {T2}
s_and_b32 {B}, {IX}, 15''')
for (r, off, sz) in srd_info:
    a(f's_mov_b32 s{r+2}, {sz}\ns_mov_b32 s{r+3}, 0x00020000')
a(f'''s_lshr_b32 {T1}, {IX}, 2
s_lshl_b32 {T2}, {T0}, 1
s_add_u32 {T2}, {T2}, {T1}
s_lshl_b32 {T3}, {T0}, 2
s_add_u32 {T3}, {T3}, {T1}
s_add_u32 {T3}, {T3}, 14
s_cmp_lt_u32 {IX}, 8
s_cselect_b32 {T4}, {T2}, {T3}
s_and_b32 {T5}, {IX}, 3
v_lshlrev_b32 v2, 4, v1
v_and_b32 v4, 3, v1
v_lshrrev_b32 v6, 2, v1
; v8 = w_mod lane address (l/8)*6144 + (l%8)*16
v_lshrrev_b32 v7, 3, v1
v_and_b32 v9, 7, v1
v_mul_u32_u24 v8, 6144, v7
v_lshl_add_u32 v8, v9, 4, v8
v_lshlrev_b32 v10, 2, v1
s_lshl_b32 {T1}, {T5}, 2
s_add_u32 {T1}, {T1}, {WV}
s_mul_i32 {T1}, {T1}, {32*6144}
s_lshl_b32 {T2}, {T4}, 7
s_add_u32 {T1}, {T1}, {T2}
s_lshl_b32 {T2}, {T5}, 8
s_lshl_b32 {T3}, {WV}, 12
; x image lane address v5 = (l/16)*1024 + (l%16)*16 ; soffset T6 = (128rb + 8b)*1024 + wv*256
v_lshrrev_b32 v5, 4, v1
v_and_b32 v11, 15, v1
v_lshlrev_b32 v5, 10, v5
v_lshl_add_u32 v5, v11, 4, v5
s_lshl_b32 {T6}, {RB}, 17
s_lshl_b32 {T7}, {B}, 13
s_add_u32 {T6}, {T6}, {T7}
s_lshl_b32 {T7}, {WV}, 8
s_add_u32 {T6}, {T6}, {T7}
s_lshl_b32 {SW8K}, {WV}, 13
s_lshl_b32 {T7}, {WV}, 11
s_waitcnt lgkmcnt(0)''')
if DIAG:
    a('v_mov_b32 v0, 0\nv_writelane_b32 v0, s78, 0'); tsn[0] = 1
    ts('karg')
def gemv_loads():
    a(f'buffer_load_dword v104, v10, {SC}, {T2} offen')
    dma(4, 'v8', SWM, (T1, 0), 8 * 6144, (T3, L_WM), tmp=T0)
with cond(f's_cmp_ge_u32 {IX}, 8'):
    gemv_loads()
a(f's_load_dword {TAG}, s[48:49], 0')
for (r, off, sz) in srd_info[5:]:
    a(f's_load_dwordx2 s[{r}:{r+1}], s[0:1], {off}')
dma(2, 'v5', SX, (T6, 0), 4096, (T7, L_XI), tmp=T0)
m_x = a.mark()
a(f'''s_getreg_b32 {XCC}, hwreg(HW_REG_XCC_ID)
s_lshl_b32 {SLF}, {RB}, 11
s_add_u32 {SLF}, {SLF}, {LF}
s_lshl_b32 {SXB}, {RB}, 17
s_add_u32 {SXB}, {SXB}, {XB}
s_mul_i32 {SZB}, {RB}, {ZS}
s_add_u32 {SZB}, {SZB}, {ZB}
s_mov_b32 {SL2E}, {LOG2E}
s_and_b32 {TT}, {WV}, 1
s_lshr_b32 {KH}, {WV}, 1
s_lshr_b32 {TILE}, {B}, 3
s_lshl_b32 {TILE}, {TILE}, 1
s_add_u32 {TILE}, {TILE}, {TT}
s_and_b32 {CT16}, {B}, 7
s_lshl_b32 {CT16}, {CT16}, 1
s_add_u32 {CT16}, {CT16}, {KH}
; v12 = qkv tile DMA lane address (l/4)*3072 + (l%4)*16
v_mul_u32_u24 v12, 3072, v6
v_lshl_add_u32 v12, v4, 4, v12
; v13 = 128-B-row tile DMA lane address: ((l%32)/4)*1024 + (l/32)*64 + (l%4)*16
v_bfe_u32 v13, v1, 2, 3
v_lshlrev_b32 v13, 10, v13
v_lshrrev_b32 v3, 5, v1
v_lshl_add_u32 v13, v3, 6, v13
v_lshl_add_u32 v13, v4, 4, v13
; v253 = qkv touch lane address (l/8)*3072 + (l%8)*128 ; v252 = l*128
v_mul_u32_u24 v253, 3072, v7
v_lshl_add_u32 v253, v9, 7, v253
v_lshlrev_b32 v252, 7, v1''')
def touch_qkv(sec, wlo):
    with cond(f's_cmp_lg_u32 {KH}, {wlo // 2}'):
        a(f'''s_lshl_b32 {T0}, {IX}, 1
s_add_u32 {T0}, {T0}, {TT}
s_mul_i32 {T0}, {T0}, {8*3072}
buffer_load_dword {JUNK}, v253, {SWQKV}, {T0} offen offset:{sec}''')
with cond(f's_cmp_lg_u32 {WV}, {9 if opt("nowarm",0) else 0}'):
    a(f's_lshl_b32 {T0}, {B}, 13\ns_add_u32 {T0}, {T0}, {SXB}\nbuffer_load_dword {JUNK}, v252, {SWS}, {T0} offen')
with cond(f's_cmp_lg_u32 {WV}, 1'):
    a(f's_mov_b64 exec, 0xfff\nbuffer_load_dword {JUNK}, v252, {SWS}, {SLF} offen\ns_mov_b64 exec, -1')
if not opt('notouch',0): touch_qkv(1024, 2)
with cond(f's_sub_u32 {T0}, {IX}, 8\ns_cmp_ge_u32 {T0}, {0 if opt("noother",0) else 16}'):
    gemv_loads()
a(f'''s_waitcnt lgkmcnt(0)
s_mul_i32 {TAG}, {TAG}, 0x9E3779B5
s_add_u32 {TAG}, {TAG}, 0x7F4A7C15''')
def gemv_compute(first):
    if first: ts('g0')
    a(f's_waitcnt vmcnt({7 if first else 4})')
    if first: ts('gc')
    unpack(108, 104, 1)
    a(f'''v_mul_f32 v110, {NLOG2E}, v108
v_mul_f32 v111, {NLOG2E}, v109
v_exp_f32 v110, v110
v_exp_f32 v111, v111
s_lshr_b32 {T0}, {T3}, 4
s_add_u32 {T0}, {T0}, {L_SILU}
v_add_f32 v110, 1.0, v110
v_add_f32 v111, 1.0, v111
v_rcp_f32 v110, v110
v_rcp_f32 v111, v111
v_add_u32 v14, {T0}, v10
v_and_b32 v15, 48, v1
v_mul_f32 v110, v110, v108
v_mul_f32 v111, v111, v109
v_add_u32 v15, {T0}, v15
v_cvt_pk_bf16_f32 v104, v110, v111
ds_write_b32 v14, v104
v_lshrrev_b32 v14, 4, v1
v_bfe_u32 v16, v1, 2, 2
v_lshl_add_u32 v14, v14, 3, v16
v_lshlrev_b32 v14, 7, v14
v_lshl_add_u32 v14, v4, 3, v14
s_lshl_b32 {T0}, {WV}, 5
s_add_u32 {T0}, {T0}, {L_WM}
v_add_u32 v14, {T0}, v14''')
    for n in range(4): a(f'ds_read_b128 {v(32+4*n,4)}, v15 offset:{64*n}')
    if first: ts('gs')
    a(f's_waitcnt vmcnt({opt("gw",3) if first else 0})')
    if first: ts('gw')
    a('s_barrier')
    if first: ts('gb')
    for n in range(4):
        a(f'ds_read_b64_tr_b16 {v(48+4*n,2)}, v14 offset:{4096*n}\nds_read_b64_tr_b16 {v(50+4*n,2)}, v14 offset:{4096*n+512}')
    if first:
        a(f'''s_and_b32 {T0}, {T4}, 7
s_lshl_b32 {T0}, {T0}, 9
s_lshl_b32 {T1}, {WV}, 7
s_add_u32 {T0}, {T0}, {T1}
s_lshr_b32 {T1}, {T4}, 3
s_lshl_b32 {T1}, {T1}, 5
s_add_u32 {T0}, {T0}, {T1}
v_and_b32 v16, 16, v1
v_and_b32 v17, 32, v1
v_lshl_add_u32 v16, v17, 1, v16''')
    else:
        a(f'''s_lshl_b32 {T0}, {T4}, 8
s_lshl_b32 {T1}, {WV}, 6
s_add_u32 {T0}, {T0}, {T1}
v_mov_b32 v16, v1''')
    a(f'''s_mul_i32 {T1}, {T5}, {MPS}
s_add_u32 {T0}, {T0}, {T1}
s_add_u32 {T0}, {T0}, {MOD}
s_mov_b32 {T1}, 0x07060501
s_mov_b32 {T2}, 0x07060502
s_mov_b32 {T3}, 0x07060503
v_mov_b32 v103, {TAG}''')
    for n in range(4):
        a(f's_waitcnt lgkmcnt({6-2*n})\n{MF16} v[96:99], {v(48+4*n,4)}, {v(32+4*n,4)}, {"0" if n == 0 else "v[96:99]"}')
    a(f'''v_perm_b32 v100, v96, v99, {T1}
v_perm_b32 v101, v97, v99, {T2}
v_perm_b32 v102, v98, v99, {T3}
s_mov_b32 exec_lo, 0x00010001
s_mov_b32 exec_hi, 0x00010001
buffer_store_dwordx4 v[100:103], v16, {SWS}, {T0} offen sc1
s_mov_b64 exec, -1''')
    if first and DIAG and opt('gack',0):
        ts('gst'); a('s_waitcnt vmcnt(0)'); ts('gack')
with cond(f's_cmp_ge_u32 {IX}, 8'):
    gemv_compute(True)
with cond(f's_cmp_lg_u32 {WV}, 3'):
    a(f'''s_lshl_b32 {T6}, {RB}, 4
s_add_u32 {T6}, {T6}, {B}
s_lshl_b32 {T6}, {T6}, 7
s_add_u32 {T6}, {T6}, {XCCF}
v_mov_b32 v3, 0
v_mov_b32 v14, {TAG}
v_mov_b32 v15, {XCC}
s_mov_b64 exec, 1
buffer_store_dwordx2 v[14:15], v3, {SWS}, {T6} offen sc1
s_mov_b64 exec, -1
v_and_b32 v14, 63, v10
v_add_u32 v14, {L_ZERO}, v14
ds_write_b32 v14, v3
s_lshl_b32 {T6}, {B}, 10''')
    dma(1, 'v2', SWPHI, (T6, 0), 0, (None, L_WPHI), tmp=T0)
ts('gemv')
a(f'''v_lshlrev_b32 v14, 8, v4
v_lshl_add_u32 v14, v6, 4, v14
s_lshl_b32 {T7}, {WV}, 11
s_add_u32 {T7}, {T7}, {L_XI}
v_add_u32 v14, {T7}, v14
s_waitcnt vmcnt(1)
ds_read_b128 v[176:179], v14
ds_read_b128 v[180:183], v14 offset:1024
s_waitcnt lgkmcnt(0)''')
unpack(192, 176, 8)
def red4(rs, ts_):
    for rot in (4, 8):
        for r in rs: a(f'v_add_f32_dpp v{r}, v{r}, v{r} row_ror:{rot} row_mask:0xf bank_mask:0xf')
    for sw in ('16', '32'):
        for r, t in zip(rs, ts_): a(f'v_mov_b32 v{t}, v{r}')
        for r, t in zip(rs, ts_): a(f'v_permlane{sw}_swap_b32 v{t}, v{r}')
        for r, t in zip(rs, ts_): a(f'v_add_f32 v{r}, v{r}, v{t}')
a('v_add_f32 v224, v192, v193\nv_add_f32 v226, v200, v201')
for i in range(2, 8): a(f'v_add_f32 v224, v224, v{192+i}\nv_add_f32 v226, v226, v{200+i}')
red4([224, 226], [228, 229])
a(f'v_mul_f32 v224, {1/128}, v224\nv_mul_f32 v226, {1/128}, v226')
for i in range(8): a(f'v_sub_f32 v{208+i}, v{192+i}, v224\nv_sub_f32 v{216+i}, v{200+i}, v226')
a('v_mul_f32 v225, v208, v208\nv_mul_f32 v227, v216, v216')
for i in range(1, 8): a(f'v_fmac_f32 v225, v{208+i}, v{208+i}\nv_fmac_f32 v227, v{216+i}, v{216+i}')
red4([225, 227], [228, 229])
a(f'''v_lshlrev_b32 v14, 6, v4
v_add_u32 v14, {L_LN}, v14
s_lshl_b32 {T7}, {WV}, 4
v_add_u32 v15, {T7}, v14
ds_write_b128 v15, v[224:227]''')
with cond(f's_sub_u32 {T0}, {IX}, 8\ns_cmp_ge_u32 {T0}, {0 if opt("noother",0) else 16}'):
    gemv_compute(False)
    a(f'v_lshlrev_b32 v14, 6, v4\nv_add_u32 v14, {L_LN}, v14')
ts('lnp')
a(f's_waitcnt vmcnt(0) lgkmcnt(0)\ns_barrier')
ts('lnbar')
a(f'''s_mul_i32 {SWOFF}, {WV}, {128*3072}
s_lshl_b32 {T7}, {B}, 6
s_add_u32 {SWOFF}, {SWOFF}, {T7}''')
dma(8, 'v12', SWQKV, (SWOFF, 1024), 16 * 3072, (SW8K, S[0]))
for w in range(4): a(f'ds_read_b128 {v(208+4*w,4)}, v14 offset:{16*w}')
a(f'''v_bfe_u32 v7, v1, 4, 1
v_lshl_add_u32 v7, v7, 2, v4        ; q
v_and_b32 v8, 1, v7
v_lshrrev_b32 v9, 1, v7             ; a
v_bfe_u32 v10, v1, 2, 2             ; rr
v_lshlrev_b32 v11, 9, v8
v_lshl_add_u32 v11, v10, 5, v11
v_lshl_add_u32 v11, v9, 3, v11
v_add_u32 v11, {L_WPHI}, v11
ds_read_b64_tr_b16 v[24:25], v11
ds_read_b64_tr_b16 v[26:27], v11 offset:128
ds_read_b64_tr_b16 v[28:29], v11 offset:256
ds_read_b64_tr_b16 v[30:31], v11 offset:384
v_lshrrev_b32 v3, 5, v1
v_lshl_add_u32 v14, v3, 3, v10
v_lshlrev_b32 v14, 6, v14
v_lshl_add_u32 v14, v8, 5, v14
v_lshl_add_u32 v14, v9, 3, v14
v_bfe_u32 v8, v1, 2, 1
v_cmp_eq_u32 vcc, v8, v3
s_waitcnt lgkmcnt(0)''')
for i in range(8): a(f'v_cndmask_b32 v{24+i}, 0, v{24+i}, vcc')
for r in range(2):
    m, q = 208 + 2 * r, 209 + 2 * r
    a(f'''v_add_f32 v224, v{m}, v{m+4}
v_add_f32 v225, v{m+8}, v{m+12}
v_add_f32 v226, v{q}, v{q+4}
v_add_f32 v227, v{q+8}, v{q+12}
v_add_f32 v224, v224, v225
v_add_f32 v226, v226, v227
v_mul_f32 v224, 0.25, v224
v_sub_f32 v{m}, v{m}, v224
v_sub_f32 v{m+4}, v{m+4}, v224
v_sub_f32 v{m+8}, v{m+8}, v224
v_sub_f32 v{m+12}, v{m+12}, v224
v_mul_f32 v225, v{m}, v{m}
v_fmac_f32 v225, v{m+4}, v{m+4}
v_fmac_f32 v225, v{m+8}, v{m+8}
v_fmac_f32 v225, v{m+12}, v{m+12}
v_mov_b32 v227, 0x3727c5ac
v_fmac_f32 v227, {1/512}, v226
v_fmac_f32 v227, 0.25, v225
v_rsq_f32 v227, v227''')
    for i in range(8): a(f'v_sub_f32 v{176+8*r+i}, v{192+8*r+i}, v224')
    for i in range(8): a(f'v_mul_f32 v{176+8*r+i}, v{176+8*r+i}, v227')
ts('ln')
a(f'''v_and_b32 v7, 15, v1
v_lshlrev_b32 v7, 7, v7
s_lshl_b32 {T6}, {RB}, 11
s_add_u32 {T6}, {T6}, {XCCF}
s_lshl_b32 {T0}, {WV}, 10
s_add_u32 {T0}, {T0}, {MOD}
s_add_u32 {T1}, {T0}, {MPS}
s_add_u32 {T2}, {T0}, {2*MPS}
s_add_u32 {T3}, {T0}, {3*MPS}
v_mov_b32 v15, 0xffff0000
v_cmp_lt_u32 vcc, 1, v4
s_mov_b32 {T4}, 0x0c0c0400
s_mov_b32 {T5}, 0x0401000c
v_cndmask_b32 v10, 0, 1.0, vcc
; h store address: chunk = 16wv + l/4 -> (chunk/2)*1024 + (chunk%2)*512 + (b%4)*128 + (t%4)*16 (+64 for rows 4..7)
v_lshlrev_b32 v11, 9, v6
v_lshl_add_u32 v11, v4, 4, v11''')
poll([f'buffer_load_dwordx4 {v(208+4*p,4)}, v2, {SWS}, {[T0,T1,T2,T3][p]} offen sc1' for p in range(4)] +
     [f'buffer_load_dwordx2 v[8:9], v7, {SWS}, {T6} offen sc1'], tagcheck([211, 215, 219, 223, 8], 224, 225))
ts('mod')
if opt('tv', 0) == 0:
    touch_qkv(2048, 0); touch_qkv(0, 2)
def gran_d(g):
    a(f'v_perm_b32 v{g+3}, v{g+1}, v{g}, {T4}\nv_perm_b32 v{g+3}, v{g+2}, v{g+3}, {T5}')
for p in range(4): gran_d(208 + 4 * p)
a(f'v_cmp_ne_u32 vcc, {XCC}, v9')
for i in range(4): a(f'v_add_f32 v{208+i}, v{208+i}, v{212+i}\nv_add_f32 v{216+i}, v{216+i}, v{220+i}')
a(f's_cmp_eq_u64 vcc, 0\ns_cselect_b32 {LOC}, {0 if FORCE_GLOBAL else 1}, 0')
for i in range(4): a(f'v_add_f32 v{208+i}, v{208+i}, v{216+i}')
a('v_cvt_pk_bf16_f32 v212, v208, v209\nv_cvt_pk_bf16_f32 v213, v210, v211')
unpack(208, 212, 2)
for i in range(4): a(f'v_add_f32 v{208+i}, v{208+i}, v10')
a('v_cvt_pk_bf16_f32 v224, v208, v209\nv_cvt_pk_bf16_f32 v225, v210, v211')
a(f'''s_lshr_b32 {T6}, {B}, 2
s_lshl_b32 {T6}, {T6}, 15
s_add_u32 {T6}, {T6}, {SW8K}''')
for q in range(4):
    for d in range(2):
        base = 192 + 4 * q + 2 * d
        qp = f'quad_perm:[{q},{q},{q},{q}] row_mask:0xf bank_mask:0xf'
        a(f'v_cvt_f32_bf16_dpp v{base}, v{224+d} {qp}\nv_and_b32_dpp v{base+1}, v{224+d}, v15 {qp}')
a(f'''s_and_b32 {T7}, {B}, 3
s_lshl_b32 {T7}, {T7}, 7
s_add_u32 {T6}, {T6}, {T7}
s_add_u32 {T6}, {T6}, {SXB}''')
for i in range(16): a(f'v_fma_f32 v{176+i}, v{176+i}, v{200+i%8}, v{192+i%8}')
for i in range(8): a(f'v_cvt_pk_bf16_f32 v{176+i}, v{176+2*i}, v{177+2*i}')
dual([f'buffer_store_dwordx4 v[176:179], v11, {SWS}, {T6} offen', f'buffer_store_dwordx4 v[180:183], v11, {SWS}, {T6} offen offset:64'])
a(f'''s_lshl_b32 {T6}, {B}, 4
s_lshl_b32 {T7}, {WV}, 2
s_add_u32 {T6}, {T6}, {T7}
s_add_u32 {T6}, {T6}, {SLF}''')
flag_store(T6, HF)
a(f'''v_and_b32 v7, 15, v1
v_lshlrev_b32 v7, 2, v7
s_lshl_b32 {T6}, {WV}, 6
s_add_u32 {T6}, {T6}, {SLF}''')
poll_flag('v7', T6, HF)
ts('hpoll')
if opt('tv', 0) == 1:
    touch_qkv(2048, 0); touch_qkv(0, 2)
a(f's_lshl_b32 {T6}, {WV}, 15\ns_add_u32 {T6}, {T6}, {SXB}')
mk = frag_loads(32, T6, lambda ks: ac(4 * ks, 4))
a('s_barrier')
dma(8, 'v12', SWQKV, (SWOFF, 2048), 16 * 3072, (SW8K, S[1]))
m_v = a.mark()
dma(8, 'v12', SWQKV, (SWOFF, 0), 16 * 3072, (SW8K, S[2]))
m_q = a.mark()
gemm_loop(32, [('v[32:47]', 'v14', S[0])], lambda ks: ac(4 * ks, 4), 80, 3, marks=mk)
ts('kgemm')
for i in range(8): a(f'v_cvt_pk_bf16_f32 v{32+i}, v{32+2*i}, v{33+2*i}')
a(f'{MF} v[64:79], v[24:27], v[32:35], 0\n{MF} v[64:79], v[28:31], v[36:39], v[64:79]')
a(f'''v_and_b32 v7, 31, v1
v_mul_u32_u24 v7, 96, v7
v_lshrrev_b32 v3, 5, v1
v_mul_u32_u24 v8, 12288, v3
v_add_u32 v8, v7, v8
s_mul_i32 {T6}, {WV}, {32*96}
s_add_u32 {T6}, {T6}, {L_PV}
v_add_u32 v8, {T6}, v8''')
softmax16(64, 104, 152)
for i in range(4): a(f'ds_write_b128 v8, {v(152+4*i,4)} offset:{16*i}')
a(f's_waitcnt vmcnt({a.vmw(m_v)})\ns_barrier')
ts('smk')
gemm_loop(32, [('v[48:63]', 'v14', S[1])], lambda ks: ac(4 * ks, 4), 80, 3)
a(f'''v_lshrrev_b32 v7, 2, v1
v_mul_u32_u24 v7, 96, v7
v_and_b32 v4, 3, v1
v_lshl_add_u32 v7, v4, 3, v7
s_mul_i32 {T6}, {KH}, 12288
s_add_u32 {T6}, {T6}, {L_PV}
v_add_u32 v7, {T6}, v7
s_lshl_b32 {T7}, {TT}, 5
v_add_u32 v9, {T7}, v7
v_mov_b32 v100, 0x3f803f80
v_mov_b32 v101, 0x3f803f80
v_mov_b32 v102, 0x3f803f80
v_mov_b32 v103, 0x3f803f80''')
for i in range(8): a(f'v_cvt_pk_bf16_f32 v{48+i}, v{48+2*i}, v{49+2*i}')
a(f'''ds_write_b128 v8, v[48:51] offset:64
ds_write_b128 v8, v[52:55] offset:80
s_waitcnt vmcnt({a.vmw(m_q)}) lgkmcnt(0)
s_barrier''')
for n in range(4):
    for u in range(2):
        a(f'ds_read_b64_tr_b16 {v(32+4*n+2*u,2)}, v9 offset:{(32*n+16*u)*96}')
        a(f'ds_read_b64_tr_b16 {v(48+4*n+2*u,2)}, v7 offset:{(32*n+16*u)*96+64}')
a(f'''s_lshl_b32 {T6}, {B}, 2
s_add_u32 {T6}, {T6}, {WV}
s_mul_i32 {SKV}, {T6}, {16*768}
s_add_u32 {SKV}, {SKV}, {KV}
s_mul_i32 {T6}, {RB}, 768
s_add_u32 {T6}, {T6}, {SKV}
v_and_b32 v7, 15, v1
v_lshlrev_b32 v7, 5, v7
v_lshrrev_b32 v8, 4, v1
v_lshl_add_u32 v7, v8, 3, v7''')
for n in range(4):
    a(f's_waitcnt lgkmcnt({12-4*n})')
    a(f'{MF16} v[64:67], {v(32+4*n,4)}, {v(48+4*n,4)}, {"0" if n == 0 else "v[64:67]"}')
    a(f'{MF16} v[68:71], {v(32+4*n,4)}, v[100:103], {"0" if n == 0 else "v[68:71]"}')
a(f'''v_cvt_pk_bf16_f32 v64, v64, v65
v_cvt_pk_bf16_f32 v65, v66, v67
buffer_store_dwordx2 v[64:65], v7, {SWS}, {T6} offen sc1
s_mov_b32 exec_lo, 0x00010001
s_mov_b32 exec_hi, 0x00010001
buffer_store_dwordx4 v[68:71], v1, {SWS}, {T6} offen offset:512 sc1
s_mov_b64 exec, -1
s_mov_b32 {T5}, {T6}''')
m_kv = a.mark()
ts('kvpub')
a(f'''v_lshrrev_b32 v6, 2, v1
v_mul_u32_u24 v12, 2752, v6
v_xor_b32 v15, 2, v4
v_lshl_add_u32 v15, v15, 4, v12
v_lshl_add_u32 v12, v4, 4, v12
s_mul_i32 {SGU}, {WV}, {128*2752}
s_lshl_b32 {T7}, {B}, 6
s_add_u32 {SGU}, {SGU}, {T7}
s_and_b32 {T6}, {B}, 7
s_lshl_b32 {T6}, {T6}, 7
s_lshl_b32 {T7}, {WV}, 16
s_add_u32 {SWOFF}, {T6}, {T7}
v_add_u32 v7, {S[2]}, v14''')
def q_extra(ks):
    if ks == 14:
        flag_store(T5, 640, local=False, m=m_kv)
        with cond(f's_cmp_eq_u32 {WV}, 3'):
            a(f'''v_add_u32 v9, {SW8K}, v252
v_min_u32 v9, {171*128}, v9
s_mul_i32 {T6}, {B}, {172*128}
s_add_u32 {T6}, {T6}, {SZB}
buffer_load_dword {JUNK}, v9, {SWS}, {T6} offen''')
        with cond(f's_cmp_lg_u32 {WV}, 3'):
            a(f'''s_lshl_b32 {T6}, {RB}, 15
s_lshl_b32 {T7}, {B}, 11
s_add_u32 {T6}, {T6}, {T7}
s_add_u32 {T6}, {T6}, {ST}
s_mov_b64 exec, 0xffff
buffer_load_dword {JUNK}, v252, {SWS}, {T6} offen
s_mov_b64 exec, -1''')
        dma(8, 'v13', SWO, (SWOFF, 0), 8192, (SW8K, S[3]))
        dma(8, 'v13', SWO, (SWOFF, 262144), 8192, (SW8K, S[0]))
gemm_loop(32, [('v[32:47]', 'v7', 0)], lambda ks: ac(4 * ks, 4), 80, 3, extra=q_extra)
for i in range(8): a(f'v_cvt_pk_bf16_f32 v{32+i}, v{32+2*i}, v{33+2*i}')
a(f'{MF} v[64:79], v[24:27], v[32:35], 0\n{MF} v[64:79], v[28:31], v[36:39], v[64:79]')
softmax16(64, 104, 152)
ts('smq')
a(f'''v_and_b32 v10, 15, v1
v_mul_u32_u24 v7, 768, v10''')
poll_flag('v7', SKV, 640)
ts('kvpoll')
a(f'''v_lshrrev_b32 v3, 5, v1
v_mul_u32_u24 v7, 768, v3
v_and_b32 v8, 31, v1
v_lshl_add_u32 v7, v8, 4, v7
v_lshrrev_b32 v11, 4, v1
v_mul_u32_u24 v9, 768, v11
v_lshl_add_u32 v9, v10, 2, v9''')
for p in range(4):
    if p: a(f's_add_u32 {T6}, {SKV}, {3072*p}')
    so = T6 if p else SKV
    a(f'buffer_load_dwordx4 {v(32+8*p,4)}, v7, {SWS}, {so} offen sc1')
    a(f'buffer_load_dwordx4 {v(36+8*p,4)}, v7, {SWS}, {so} offen offset:1536 sc1')
    a(f'buffer_load_dword v{64+p}, v9, {SWS}, {so} offen offset:512 sc1')
m_kvl = a.mark()
a(f'''v_mul_u32_u24 v9, {MPS}, v11
v_lshl_add_u32 v9, v10, 4, v9
s_and_b32 {T6}, {B}, 7
s_lshl_b32 {T6}, {T6}, 8
s_lshl_b32 {T7}, {WV}, 11
s_add_u32 {T6}, {T6}, {T7}
s_add_u32 {T6}, {T6}, {MOD + 4096}
buffer_load_dwordx4 v[176:179], v9, {SWS}, {T6} offen sc1''')
m_par = a.mark()
with cond(f's_or_b32 {T6}, s2, {WV}\ns_cmp_lg_u32 {T6}, 0'):
    a(f'''v_mov_b32 v68, 0
v_mov_b32 v69, {TAG}
s_mov_b64 exec, 1
buffer_store_dword v69, v68, {SWS}, 0 offen sc1
s_mov_b64 exec, -1''')
a(f'''v_lshlrev_b32 v9, 10, v8
v_lshl_add_u32 v9, v3, 4, v9
s_lshl_b32 {T6}, {RB}, 2
s_add_u32 {T6}, {T6}, {TILE}
s_lshl_b32 {T6}, {T6}, 15
s_lshl_b32 {T7}, {CT16}, 6
s_add_u32 {T6}, {T6}, {T7}
buffer_load_dwordx4 v[168:171], v9, {SX}, {T6} offen
buffer_load_dwordx4 v[172:175], v9, {SX}, {T6} offen offset:32''')
dma(8, 'v12', SWG, (SGU, 0), 16 * 2752, (SW8K, S[1]))
a(f'''s_mov_b32 {T4}, 0x00003f80
s_mov_b32 {T5}, 0x3f800000
s_waitcnt vmcnt({a.vmw(m_kvl)})''')
for p in range(8):
    for d in range(4):
        a(f'v_dot2_f32_bf16 v{72+2*d}, v{32+4*p+d}, {T4}, {"0" if p == 0 else "v%d" % (72+2*d)}')
        a(f'v_dot2_f32_bf16 v{73+2*d}, v{32+4*p+d}, {T5}, {"0" if p == 0 else "v%d" % (73+2*d)}')
a('v_add_f32 v64, v64, v65\nv_add_f32 v66, v66, v67\nv_add_f32 v64, v64, v66')
for i in range(4): a(f'v_permlane32_swap_b32 v{72+i}, v{76+i}')
a('v_mov_b32 v65, v64')
for i in range(4): a(f'v_add_f32 v{72+i}, v{72+i}, v{76+i}')
a(f'''v_permlane32_swap_b32 v65, v64
v_cvt_pk_bf16_f32 v72, v72, v73
v_cvt_pk_bf16_f32 v73, v74, v75
v_add_f32 v64, v64, v65
v_lshrrev_b32 v7, 1, v8
v_mov_b32 v65, v64
v_mul_u32_u24 v7, 80, v7
v_and_b32 v9, 1, v1
v_permlane16_swap_b32 v65, v64
v_lshl_add_u32 v7, v9, 4, v7
v_lshl_add_u32 v7, v3, 3, v7
s_mul_i32 {T6}, {KH}, 1280
s_lshl_b32 {T7}, {TT}, 5
s_add_u32 {T6}, {T6}, {T7}
s_add_u32 {T6}, {T6}, {L_KVT}
v_add_u32 v7, {T6}, v7
v_add_f32 v64, v64, v65
ds_write_b64 v7, v[72:73]
v_cvt_pk_bf16_f32 v64, v64, v64
s_lshl_b32 {T6}, {WV}, 5
s_add_u32 {T6}, {T6}, {L_Z}
v_lshlrev_b32 v9, 1, v10
v_add_u32 v9, {T6}, v9
ds_write_b16 v9, v64
s_mov_b32 {T4}, 0x0c0c0400
s_mov_b32 {T5}, 0x0401000c
s_waitcnt vmcnt({a.vmw(m_par)})''')
gran_d(176)
a(f'''s_cmp_eq_u32 {WV}, 2
s_cselect_b32 {T6}, 1.0, 0
v_permlane32_swap_b32 v176, v178
v_permlane32_swap_b32 v177, v179
v_add_f32 v176, v176, v178
v_add_f32 v177, v177, v179
v_lshlrev_b32 v9, 4, v10
v_lshl_add_u32 v9, v11, 2, v9
v_permlane16_swap_b32 v176, v177
s_lshl_b32 {T7}, {WV}, 8
s_add_u32 {T7}, {T7}, {L_PAR}
v_add_f32 v176, v176, v177
v_add_u32 v9, {T7}, v9
v_cvt_pk_bf16_f32 v176, v176, v176
v_and_b32 v176, 0xffff0000, v176
v_add_f32 v176, {T6}, v176
v_cvt_pk_bf16_f32 v176, v176, v176
v_and_b32 v176, 0xffff0000, v176
ds_write_b32 v9, v176
; A-frag address: rho = l%32, h' = (rho/4)%2, d = 4*(rho/8) + rho%4
v_bfe_u32 v7, v1, 3, 2
v_and_b32 v4, 3, v1
v_lshl_add_u32 v7, v7, 2, v4
v_mul_u32_u24 v7, 80, v7
v_mul_u32_u24 v9, 1280, v3
v_add_u32 v7, v7, v9
v_add_u32 v7, {L_KVT}, v7
v_bfe_u32 v9, v1, 2, 1
v_cmp_eq_u32 vcc, v9, v3
v_mov_b32 v9, {L_ZERO}
v_lshlrev_b32 v10, 6, v3
v_cndmask_b32 v7, v9, v7, vcc
v_add_u32 v10, {L_Z}, v10
s_waitcnt lgkmcnt(0)
s_barrier''')
for s in range(4): a(f'ds_read_b128 {v(32+4*s,4)}, v7 offset:{16*s}')
for s in range(4): a(f'ds_read_b128 {v(48+4*s,4)}, v10 offset:{16*s}')
a(f'''s_lshl_b32 {T6}, {WV}, 15
s_lshl_b32 {T7}, {B}, 11
s_add_u32 {T6}, {T6}, {T7}
s_add_u32 {T6}, {T6}, {SZB}
v_mov_b32 v80, 0x358637bd
s_waitcnt lgkmcnt(4)''')
for s in range(4): a(f'{MF} v[64:79], {v(32+4*s,4)}, {v(152+4*s,4)}, {"0" if s == 0 else "v[64:79]"}')
a('s_waitcnt lgkmcnt(0)')
for i in range(16): a(f'v_dot2_f32_bf16 v80, v{152+i}, v{48+i}, v80')
a('v_rcp_f32 v80, v80')
for i in range(16): a(f'v_mul_f32 v{64+i}, v{64+i}, v80')
for i in range(8): a(f'v_cvt_pk_bf16_f32 v{64+i}, v{64+2*i}, v{65+2*i}')
dual([f'buffer_store_dwordx4 v[64:67], v2, {SWS}, {T6} offen', f'buffer_store_dwordx4 v[68:71], v2, {SWS}, {T6} offen offset:1024'])
a(f'''s_lshl_b32 {T6}, {WV}, 6
s_lshl_b32 {T7}, {B}, 2
s_add_u32 {T6}, {T6}, {T7}
s_add_u32 {T6}, {T6}, {SLF}
v_lshlrev_b32 v9, 5, v3
s_lshl_b32 {T7}, {KH}, 7
s_add_u32 {T7}, {T7}, {L_PAR}
v_add_u32 v9, {T7}, v9''')
for sec in range(4):
    for s in range(2):
        for g in range(2):
            a(f'ds_read_b128 {v(104+16*sec+8*s+4*g,4)}, v9 offset:{256*sec + 64*s + 16*g}')
flag_store(T6, OF)
ts('opub')
unpack(16, 168, 8)
a(f'''v_and_b32 v4, 3, v1
v_bfe_u32 v5, v1, 4, 1
v_lshlrev_b32 v5, 5, v5
v_and_b32 v6, 1, v1
v_lshl_add_u32 v5, v6, 4, v5
v_bfe_u32 v6, v1, 1, 1
v_lshl_add_u32 v5, v6, 3, v5
v_bfe_u32 v6, v1, 2, 2
v_lshl_add_u32 v5, v6, 6, v5
v_lshrrev_b32 v3, 5, v1
v_lshl_add_u32 v8, v3, 11, v5
s_cmp_eq_u32 {KH}, 0
s_cselect_b32 {T7}, {S[3] + 512}, {S[0]}
s_xor_b32 {T6}, {T7}, 512
v_add_u32 v9, {T7}, v8
v_add_u32 v8, {T6}, v8
v_and_b32 v7, 7, v1
v_lshlrev_b32 v7, 2, v7
s_lshl_b32 {T6}, {TILE}, 6
s_lshl_b32 {T7}, {KH}, 5
s_add_u32 {T6}, {T6}, {T7}
s_add_u32 {T6}, {T6}, {SLF}
s_waitcnt lgkmcnt(0)''')
for i in range(8): a(f'v_cvt_pk_bf16_f32 v{88+i}, v{152+2*i}, v{153+2*i}')
poll_flag('v7', T6, OF)
ts('opoll')
a(f'''s_lshl_b32 {T6}, {TILE}, 15
s_lshl_b32 {T7}, {KH}, 14
s_add_u32 {T6}, {T6}, {T7}
s_add_u32 {T6}, {T6}, {SZB}''')
mk = frag_loads(16, T6, lambda ks: ac(4 * ks, 4))
dma(8, 'v15', SWU, (SGU, 0), 16 * 2752, (SW8K, S[2]))
gemm_loop(16, [('v[48:63]', 'v9', 0), ('v[32:47]', 'v8', 0)], lambda ks: ac(4 * ks, 4), 64, 2, marks=mk,
          koff=lambda ks: (ks // 2) * 4096 + (ks % 2) * 1024)
a(f'''s_lshl_b32 {T6}, {WV}, 12
s_add_u32 {T6}, {T6}, {S[4]}
s_xor_b32 {T7}, {T6}, 8192
v_add_u32 v8, {T6}, v2
v_add_u32 v9, {T7}, v2''')
for i in range(4): a(f'ds_write_b128 v8, {v(48+4*i,4)} offset:{1024*i}')
a('s_waitcnt lgkmcnt(0)\ns_barrier')
for i in range(4): a(f'ds_read_b128 {v(48+4*i,4)}, v9 offset:{1024*i}')
a(f'''s_lshl_b32 {T6}, {RB}, 15
s_lshl_b32 {T7}, {TILE}, 13
s_add_u32 {T6}, {T6}, {T7}
s_add_u32 {T5}, {T6}, {ST}
s_lshl_b32 {T7}, {CT16}, 9
s_add_u32 {T6}, {T5}, {T7}
v_mov_b32 v66, {TAG}
v_mov_b32 v67, {TAG}
s_waitcnt lgkmcnt(0)''')
for i in range(16): a(f'v_add_f32 v{32+i}, v{32+i}, v{48+i}')
for i in range(16): a(f'v_fmac_f32 v{16+i}, v{32+i}, v{104+i}')
a('v_add_f32 v64, v16, v17\nv_mul_f32 v65, v16, v16\nv_fmac_f32 v65, v17, v17')
for i in range(2, 16): a(f'v_add_f32 v64, v64, v{16+i}\nv_fmac_f32 v65, v{16+i}, v{16+i}')
a(f'''v_mov_b32 v68, v64
v_mov_b32 v69, v65
s_nop 0
v_permlane32_swap_b32 v68, v64
v_permlane32_swap_b32 v69, v65
v_add_f32 v64, v64, v68
v_add_f32 v65, v65, v69
s_mov_b32 exec_hi, 0''')
dual([f'buffer_store_dwordx4 v[64:67], v2, {SWS}, {T6} offen'])
a('s_mov_b32 exec_hi, -1')
ts('stpub')
a(f'''v_and_b32 v7, 31, v1
v_lshlrev_b32 v7, 4, v7
v_lshl_add_u32 v7, v3, 12, v7''')
poll([f'buffer_load_dwordx4 {v(32+4*p,4)}, v7, {SWS}, {T5} offen offset:{512*p} sc1' for p in range(8)], tagcheck([34 + 4 * p for p in range(8)], 64, 65))
ts('stpoll')
for p in range(1, 8): a(f'v_add_f32 v32, v32, v{32+4*p}\nv_add_f32 v33, v33, v{33+4*p}')
a(f'''v_mov_b32 v34, v32
v_mov_b32 v35, v33
s_lshl_b32 {T6}, {TILE}, 15
v_permlane32_swap_b32 v34, v32
v_permlane32_swap_b32 v35, v33
v_add_f32 v32, v32, v34
v_add_f32 v33, v33, v35
v_mul_f32 v32, {1/512}, v32
v_mov_b32 v34, 0x3727c5ac
v_fmac_f32 v34, {1/512}, v33
v_fma_f32 v34, -v32, v32, v34
v_max_f32 v34, 0x3727c5ac, v34
v_rsq_f32 v34, v34
s_lshl_b32 {T7}, {CT16}, 11
v_mul_f32 v32, v32, v34
s_add_u32 {T6}, {T6}, {T7}
s_add_u32 {T6}, {T6}, {SXB}''')
for i in range(16): a(f'v_fma_f32 v{48+i}, v{16+i}, v34, -v32')
for i in range(16): a(f'v_fmac_f32 v{120+i}, v{48+i}, v{136+i}')
for i in range(8): a(f'v_cvt_pk_bf16_f32 v{48+i}, v{120+2*i}, v{121+2*i}')
dual([f'buffer_store_dwordx4 v[48:51], v2, {SWS}, {T6} offen', f'buffer_store_dwordx4 v[52:55], v2, {SWS}, {T6} offen offset:1024'])
a(f'''s_lshl_b32 {T6}, {TILE}, 6
s_lshl_b32 {T7}, {CT16}, 2
s_add_u32 {T6}, {T6}, {T7}
s_add_u32 {T6}, {T6}, {SLF}''')
flag_store(T6, H2F)
a(f'''v_and_b32 v7, 15, v1
v_lshlrev_b32 v7, 2, v7
s_lshl_b32 {T6}, {WV}, 6
s_add_u32 {T6}, {T6}, {SLF}''')
poll_flag('v7', T6, H2F)
ts('h2poll')
a(f's_lshl_b32 {T6}, {WV}, 15\ns_add_u32 {T6}, {T6}, {SXB}')
mk = frag_loads(32, T6, lambda ks: ac(4 * ks, 4))
dma(8, 'v12', SWG, (SGU, 1024), 16 * 2752, (SW8K, S[3]))
dma(8, 'v15', SWU, (SGU, 1024), 16 * 2752, (SW8K, S[0]))
a(f'''s_and_b32 {T6}, {B}, 7
s_lshl_b32 {T6}, {T6}, 7
s_lshl_b32 {T7}, {WV}, 15
s_add_u32 {SWOFF}, {T6}, {T7}
v_lshrrev_b32 v3, 5, v1
v_lshl_add_u32 v10, v3, 10, v5
s_lshl_b32 {T6}, {KH}, 9
s_xor_b32 {T7}, {T6}, 512
v_add_u32 v11, {T7}, v10
v_add_u32 v10, {T6}, v10
v_and_b32 v14, 0xffffffdf, v5
v_lshl_add_u32 v14, v3, 9, v14
s_mov_b32 s6, 0xffff0000
s_mov_b32 s7, 0xffff0000''')
def wdreg(n, k, c):
    r = 16 * n + 8 * k + 4 * c
    return ('a', 128 + r) if n < 8 else ('v', 208 + r - 128)
def stage_dma(n, lg, lc):
    dma(4, 'v13', SWD, (SWOFF, n * 131072), 8192, (lg, lc))
def stage_read(n, va0, va1, off):
    for k in range(2):
        for c in range(2):
            f, r = wdreg(n, k, c)
            for u in range(2):
                a(f'ds_read_b64_tr_b16 {f}[{r+2*u}:{r+2*u+1}], {va0 if c == 0 else va1} offset:{off + 2048*k + 256*u}')
def g3pass(i, gs, us, marks):
    a(f'''v_mov_b32 v7, {gs}
v_mov_b32 v8, {us + 32}
v_mov_b32 v9, {gs + 32}
v_mov_b32 v4, {us}
v_cndmask_b32 v8, v7, v8, s[6:7]
v_cndmask_b32 v9, v9, v4, s[6:7]
v_add_u32 v8, v8, v14
v_add_u32 v9, v9, v14''')
    gemm_loop(32, [('v[32:47]', 'v8', 0), ('v[48:63]', 'v9', 0)], lambda ks: ac(4 * ks, 4), 64, 2, marks=marks)
    a(f'''s_lshl_b32 {T6}, {B}, 13
s_lshl_b32 {T7}, {WV}, 11
s_add_u32 {T6}, {T6}, {T7}
s_add_u32 {T6}, {T6}, {SZB}
s_add_u32 {T6}, {T6}, {i * 131072}''')
    for t in range(2):
        g = 32 + 16 * t
        for r in range(8): a(f'v_mul_f32 v{g+r}, {NLOG2E}, v{g+r}')
        for r in range(8): a(f'v_exp_f32 v{g+r}, v{g+r}')
        for r in range(8): a(f'v_add_f32 v{g+r}, 1.0, v{g+r}')
        for r in range(8): a(f'v_rcp_f32 v{g+r}, v{g+r}')
        for r in range(8): a(f'v_mul_f32 v{g+r}, v{g+r}, v{g+8+r}')
        for r in range(4): a(f'v_cvt_pk_bf16_f32 v{g+r}, v{g+2*r}, v{g+2*r+1}')
    dual([f'buffer_store_dwordx4 v[32:35], v2, {SWS}, {T6} offen', f'buffer_store_dwordx4 v[48:51], v2, {SWS}, {T6} offen offset:1024'])
    a(f'''s_lshl_b32 {T6}, {WV}, 6
s_lshl_b32 {T7}, {B}, 2
s_add_u32 {T6}, {T6}, {T7}
s_add_u32 {T6}, {T6}, {SLF}''')
    flag_store(T6, HHF + 256 * i)
a(f's_add_u32 {T6}, {SW8K}, {S[4]}\nv_add_u32 v96, {T6}, v10\nv_add_u32 v97, {T6}, v11')
a('s_barrier')
stage_dma(0, SW8K, S[4]); stage_dma(1, SW8K, S[4] + 4096)
g3pass(0, S[1], S[2], mk)
stage_read(0, 'v96', 'v97', 0); stage_read(1, 'v96', 'v97', 4096)
a('s_waitcnt lgkmcnt(0)\ns_barrier')
ts('p0')
with cond(f's_cmp_ge_u32 {B}, 11'):
    dma(8, 'v12', SWG, (SGU, 2048), 16 * 2752, (SW8K, S[1]))
    dma(8, 'v15', SWU, (SGU, 2048), 16 * 2752, (SW8K, S[2]))
stage_dma(2, SW8K, S[4]); stage_dma(3, SW8K, S[4] + 4096)
g3pass(1, S[3], S[0], None)
stage_read(2, 'v96', 'v97', 0); stage_read(3, 'v96', 'v97', 4096)
a('s_waitcnt lgkmcnt(0)\ns_barrier')
ts('p1')
with cond(f's_cmp_ge_u32 {B}, 11'):
    g3pass(2, S[1], S[2], None)
    a('s_barrier')
a(f's_lshl_b32 {T5}, {WV}, 15\nv_add_u32 v96, {T5}, v10\nv_add_u32 v97, {T5}, v11')
for n in range(4, 11): stage_dma(n, T5, (n - 4) * 4096)
a(f'''v_lshrrev_b32 v3, 5, v1
v_lshrrev_b32 v7, 3, v1
v_and_b32 v4, 3, v1
v_lshl_add_u32 v8, v7, 2, v4        ; n
v_lshlrev_b32 v8, 2, v8
v_add_u32 v8, {WV}, v8              ; P
v_lshlrev_b32 v7, 8, v7
v_bfe_u32 v9, v1, 2, 1
v_lshl_add_u32 v7, v9, 6, v7
v_lshl_add_u32 v7, v4, 4, v7
v_cmp_gt_u32 vcc, 43, v8
s_and_b32 {T6}, {TILE}, 2
s_lshl_b32 {T6}, {T6}, 6
v_cndmask_b32 v7, 0, v7, vcc
s_lshl_b32 {T7}, {WV}, 2
s_add_u32 {T6}, {T6}, {T7}
s_add_u32 {T6}, {T6}, {SLF}''')
poll_flag('v7', T6, HHF)
ts('hhpoll')
for n in range(4, 11): stage_read(n, 'v96', 'v97', (n - 4) * 4096)
a(f'''s_lshl_b32 {T6}, {TILE}, 11
s_xor_b32 {T7}, {T6}, 2048
v_add_u32 v8, {T6}, v2
v_add_u32 v9, {T7}, v2
s_add_u32 {T6}, {SW8K}, {SZB}
s_waitcnt lgkmcnt(0)''')
def hhreg(n, k, t):
    r = 16 * n + 8 * k + 4 * t
    return f'v[{96+r}:{99+r}]' if n < 7 else f'a[{r-112}:{r-109}]'
mk = {}
for n in range(11):
    for k in range(2):
        for t in range(2):
            a(f'buffer_load_dwordx4 {hhreg(n,k,t)}, {"v8" if t == 0 else "v9"}, {SWS}, {T6} offen offset:{1024*k} sc1')
        mk[n, k] = a.mark()
    a(f's_add_u32 {T6}, {T6}, 32768')
for n in range(11):
    if n == 10: a(f's_cmp_eq_u32 {WV}, 3\ns_cbranch_scc1 L_g4e')
    for k in range(2):
        a(f's_waitcnt vmcnt({a.vmw(mk[n,k])})')
        for t in range(2):
            for c in range(2):
                f, r = wdreg(n, k, c)
                acc = ac(64 + 16 * (2 * c + t), 16)
                a(f'{MF} {acc}, {f}[{r}:{r+3}], {hhreg(n,k,t)}, {"0" if n == 0 and k == 0 else acc}')
a('L_g4e:\ns_waitcnt vmcnt(0)\ns_barrier')
ts('g4')
a(f's_nop 7')
for x in range(1, 4):
    a(f's_xor_b32 {T6}, {WV}, {x}\ns_lshl_b32 {T6}, {T6}, 14\nv_add_u32 v8, {T6}, v2')
    for i in range(4): a(f'ds_write_b128 v8, {ac(64+16*x+4*i,4)} offset:{4096*x + 1024*i}')
unpack(104, 88, 8)
for i in range(16): a(f'v_accvgpr_read_b32 v{32+i}, a{64+i}')
a(f's_lshl_b32 {T6}, {WV}, 14\nv_add_u32 v8, {T6}, v2\ns_waitcnt lgkmcnt(0)\ns_barrier')
for x in range(1, 4):
    for i in range(4): a(f'ds_read_b128 {v(32+16*x+4*i,4)}, v8 offset:{4096*x + 1024*i}')
for x in range(1, 4):
    a(f's_waitcnt lgkmcnt({4*(3-x)})')
    for i in range(16): a(f'v_add_f32 v{32+i}, v{32+i}, v{32+16*x+i}')
for i in range(16): a(f'v_fmac_f32 v{16+i}, v{32+i}, v{104+i}')
for i in range(8): a(f'v_cvt_pk_bf16_f32 v{16+i}, v{16+2*i}, v{17+2*i}')
a(f'''v_and_b32 v8, 31, v1
v_mul_u32_u24 v8, 144, v8
v_lshl_add_u32 v8, v3, 4, v8
s_mul_i32 {T6}, {TT}, {32*144}
s_lshl_b32 {T7}, {KH}, 6
s_add_u32 {T6}, {T6}, {T7}
s_add_u32 {T6}, {T6}, {S[4]}
v_add_u32 v8, {T6}, v8
ds_write_b128 v8, v[16:19]
ds_write_b128 v8, v[20:23] offset:32
v_lshrrev_b32 v9, 3, v1
v_and_b32 v10, 7, v1
v_mul_u32_u24 v8, 144, v9
v_lshl_add_u32 v8, v10, 4, v8
s_mul_i32 {T6}, {WV}, {16*144}
s_add_u32 {T6}, {T6}, {S[4]}
v_add_u32 v8, {T6}, v8
v_lshlrev_b32 v9, 10, v9
v_lshl_add_u32 v9, v10, 4, v9
s_lshl_b32 {T6}, {RB}, 17
s_lshr_b32 {T7}, {B}, 3
s_lshl_b32 {T7}, {T7}, 16
s_add_u32 {T6}, {T6}, {T7}
s_lshl_b32 {T7}, {WV}, 14
s_add_u32 {T6}, {T6}, {T7}
s_and_b32 {T7}, {B}, 7
s_lshl_b32 {T7}, {T7}, 7
s_add_u32 {T6}, {T6}, {T7}
s_add_u32 {T7}, {T6}, 8192
s_waitcnt lgkmcnt(0)
s_barrier
ds_read_b128 v[32:35], v8
ds_read_b128 v[36:39], v8 offset:{8*144}
s_waitcnt lgkmcnt(1)
buffer_store_dwordx4 v[32:35], v9, {SOUT}, {T6} offen sc1
s_waitcnt lgkmcnt(0)
buffer_store_dwordx4 v[36:39], v9, {SOUT}, {T7} offen sc1''')
if DIAG:
    a('s_waitcnt vmcnt(0)')
    ts('end')
    a(f'L_diag:\nv_writelane_b32 v0, s100, 60\nv_writelane_b32 v0, {LOC}, 62\nv_writelane_b32 v0, {XCC}, 63')
    a(f'''s_lshl_b32 {T6}, s2, 2
s_add_u32 {T6}, {T6}, {WV}
s_lshl_b32 {T6}, {T6}, 8
s_add_u32 {T6}, {T6}, {DG}
v_lshlrev_b32 v4, 2, v1
buffer_store_dword v0, v4, {SWS}, {T6} offen''')
a('L_end:\ns_endpgm\nL_code_end:')

body = a.resolve()
hdr = open('cdna_kernels/' + NAME + '.s.ref').read().split('; Override')[0]
def text(npf, pad):
    return f"""{hdr}; TS {' '.join(names)}
; @launch grid=(256,1,1) block=(256,1,1) lds=163840
.amdgcn_target "amdgcn-amd-amdhsa--gfx950"
.text
.globl {NAME}_kernel
.p2align 8
.type {NAME}_kernel,@function
{NAME}_kernel:
{body.replace('NPF*128', str(npf*128)).replace('NPF', str(npf))}.fill {pad}, 4, 0xbf800000
.section .rodata,"a"
.p2align 6
.amdhsa_kernel {NAME}_kernel
  .amdhsa_next_free_vgpr 512
  .amdhsa_next_free_sgpr 102
  .amdhsa_accum_offset 256
  .amdhsa_group_segment_fixed_size 0
  .amdhsa_kernarg_size 104
  .amdhsa_user_sgpr_count 2
  .amdhsa_user_sgpr_kernarg_segment_ptr 1
  .amdhsa_system_sgpr_workgroup_id_x 1
.end_amdhsa_kernel
"""
import subprocess, re
open(OUT, 'w').write(text(8, 0))
subprocess.run(['clang', '-x', 'assembler', '-target', 'amdgcn-amd-amdhsa', '-mcpu=gfx950', '-c', OUT, '-o', 'gen.o'], check=True)
sz = int(re.search(r'\.text\s+([0-9a-f]+)', subprocess.run(['llvm-objdump', '-h', 'gen.o'], capture_output=True, text=True).stdout).group(1), 16)
npf = (sz + 4095) // 4096
pad = (npf * 4096 + 256 - sz) // 4
open(OUT, 'w').write(text(npf, pad))
print('instrs', sum(1 for x in a.out if x.states), 'ts', tsn[0], 'code bytes', sz, 'npf', npf)
```
